```python
import torch

def _softmax(x, axis=-1):
    return torch.softmax(x, dim=axis)
def _gelu(x):
    return torch.nn.functional.gelu(x, approximate="tanh")
def _silu(x):
    return torch.nn.functional.silu(x)
def _sigmoid(x):
    return torch.sigmoid(x)
def _layernorm(x, axis=-1, eps=1e-5):
    m = x.mean(dim=axis, keepdim=True)
    v = x.var(dim=axis, keepdim=True, unbiased=False)
    return (x - m) / torch.sqrt(v + eps)
def _scatter_add(tgt, idx, src, axis=0):
    return tgt.clone().index_add_(axis, idx, src)
def _segment_sum(src, seg, n):
    out = torch.zeros((n,) + src.shape[1:], dtype=src.dtype)
    return out.index_add_(0, seg, src)
def _pad(x, pw):
    flat = tuple(v for pair in reversed(pw) for v in pair)
    return torch.nn.functional.pad(x, flat)

kernel_name = 'parallel_sum__sliding_block__glu_gated_bilinear__prompt'

def setup_inputs():

    _w = (lambda a: (lambda t: t.to(torch.bfloat16) if t.is_floating_point() else t)(torch.as_tensor(a)))
    def _A_setup():
        B, S, D = 1, 2048, 512
        return {
            "x": _w((lambda *s: torch.randn(*s, dtype=torch.bfloat16) * 0.05)(B, S, D)),
            "wqkv": _w((lambda *s: torch.randn(*s, dtype=torch.bfloat16) * 0.05)(D, 3 * D)),
            "wo": _w((lambda *s: torch.randn(*s, dtype=torch.bfloat16) * 0.05)(D, D)),
        }
    _A_in = _A_setup()

    def _B_setup():
        B, S, D, F = 1, 2048, 512, 1792
        return {
            "x": _w((lambda *s: torch.randn(*s, dtype=torch.bfloat16) * 0.05)(B, S, D)),
            "w_gate": _w((lambda *s: torch.randn(*s, dtype=torch.bfloat16) * 0.8)(D, F) * (D ** -0.5)),
            "w_up": _w((lambda *s: torch.randn(*s, dtype=torch.bfloat16) * 0.8)(D, F) * (D ** -0.5)),
            "w_down": _w((lambda *s: torch.randn(*s, dtype=torch.bfloat16) * 0.8)(F, D) * (F ** -0.5)),
        }
    _B_in = _B_setup()

    return {
        "A_x": _A_in["x"],
        "A_wqkv": _A_in["wqkv"],
        "A_wo": _A_in["wo"],
        "B_x": _B_in["x"],
        "B_w_gate": _B_in["w_gate"],
        "B_w_up": _B_in["w_up"],
        "B_w_down": _B_in["w_down"],
    }

def reference(A_x, A_wqkv, A_wo, B_x, B_w_gate, B_w_up, B_w_down):
    def _A_ref(x, wqkv, wo):
        B, S, D = x.shape
        H = 32; Dh = D // H; W = 256
        qkv = (lambda x, *d: x.permute(*d))((x @ wqkv).reshape(B, S, 3, H, Dh), 2, 0, 3, 1, 4)
        q, k, v = qkv[0], qkv[1], qkv[2]
        scores = torch.einsum("bhqd,bhkd->bhqk", q, k) * (Dh ** -0.5)
        idx = torch.arange(S)
        mask = (idx[:, None] - idx[None, :] >= 0) & (idx[:, None] - idx[None, :] < W)
        scores = torch.where(mask[None, None], scores, -1e9)
        p = _softmax(scores, axis=-1)
        o = torch.einsum("bhqk,bhkd->bhqd", p, v)
        return (lambda x, *d: x.permute(*d))(o, 0, 2, 1, 3).reshape(B, S, D) @ wo

    def _B_ref(x, w_gate, w_up, w_down):
        g = torch.einsum("bsd,df->bsf", x, w_gate)
        u = torch.einsum("bsd,df->bsf", x, w_up)
        h = g * u
        return torch.einsum("bsf,fd->bsd", h, w_down)

    x = A_x
    xn = _layernorm(x, axis=-1)
    return x + _A_ref(xn, A_wqkv, A_wo) + _B_ref(xn, B_w_gate, B_w_up, B_w_down)
```

```python
NAME = "parallel_sum__sliding_block__glu_gated_bilinear__prompt"

class Asm:
    def __init__(self):
        self.L = []
    def __call__(self, s, *args):
        if args: s = s % args
        for line in s.split("\n"):
            line = line.strip()
            if line: self.L.append(("    " + line) if not line.endswith(":") else line)
    def ext(self, lst):
        for x in lst: self(x)
    def text(self):
        return "\n".join(self.L) + "\n"

def vr(b, n=1, p="v"):
    return "%s%d" % (p, b) if n == 1 else "%s[%d:%d]" % (p, b, b + n - 1)
def ar(b, n=1): return vr(b, n, "a")
def sr(b, n=1): return vr(b, n, "s")

class R:
    def __init__(self, p, b, n=1): self.p, self.b, self.n = p, b, n
    def __str__(self): return vr(self.b, self.n, self.p)
    def __getitem__(self, i):
        if isinstance(i, slice):
            st = i.start or 0; en = i.stop if i.stop is not None else self.n
            assert 0 <= st < en <= self.n, (st, en, self.n)
            return R(self.p, self.b + st, en - st)
        assert 0 <= i < self.n, (i, self.n)
        return R(self.p, self.b + i, 1)

class Alloc:
    def __init__(self, p, start, limit):
        self.p, self.nxt, self.limit = p, start, limit
    def __call__(self, n=1, align=1):
        if n >= 2 and align < 2: align = 2
        self.nxt = (self.nxt + align - 1) // align * align
        r = R(self.p, self.nxt, n); self.nxt += n
        assert self.nxt <= self.limit, "out of %s regs: %d > %d" % (self.p, self.nxt, self.limit)
        return r

def interleave(main, fill, start=0, per=None, lead=0):
    out = []
    fill = list(fill)
    def put(f):
        if isinstance(f, (list, tuple)): out.extend(f)
        else: out.append(f)
    for f in fill[:lead]: put(f)
    fill = fill[lead:]
    n = len(main) - start
    k = 0
    for i, m in enumerate(main):
        put(m)
        if i >= start:
            if per is None:
                tgt = (len(fill) * (i - start + 1) + n - 1) // n
            else:
                tgt = min(len(fill), per * (i - start + 1))
            while k < tgt:
                put(fill[k]); k += 1
    while k < len(fill):
        put(fill[k]); k += 1
    return out

def merge(*streams):
    items = []
    for si, s in enumerate(streams):
        for i, x in enumerate(s):
            items.append(((i + 0.5) / len(s), si, i, x))
    items.sort(key=lambda t: (t[0], t[1]))
    return [t[3] for t in items]

def kd(label, vgpr, accum, sgpr=102):
    return """.amdhsa_kernel %s
  .amdhsa_next_free_vgpr %d
  .amdhsa_next_free_sgpr %d
  .amdhsa_accum_offset %d
  .amdhsa_group_segment_fixed_size 0
  .amdhsa_kernarg_size 80
  .amdhsa_user_sgpr_count 2
  .amdhsa_user_sgpr_kernarg_segment_ptr 1
  .amdhsa_system_sgpr_workgroup_id_x 1
.end_amdhsa_kernel""" % (label, vgpr, sgpr, accum)
```

```python
from asmlib import *
from k1 import WS_QK, WS_V, WS_AF, WS_SIZE, f2u
NEG = "0xf149f2ca"

def gen_att(a, label, opt):
    ld = opt.get("ld_flags", ""); sc = opt.get("st_flags", "")
    V = Alloc("v", 1, 256); A = Alloc("a", 0, 256)
    K = A(40, 4); VV = A(80, 4)
    Q = V(8, 4)
    S = [V(16, 4) for _ in range(3)]
    C1 = {k: V(16, 4) for k in "LMF"}
    C2 = {k: V(16, 4) for k in "LMF"}
    O = V(16, 4); P = V(8, 4)
    lane, t0, t1, t2, m, m2, vneg = [V() for _ in range(7)]
    sW = R("s", 4, 4)
    s_w, s_rt, s_hq, s_head, s_t, s_t2, s_i0, s_tb = [R("s", 8 + i) for i in range(8)]
    msk = [R("s", 32 + 2 * r, 2) for r in range(16)]
    s_kb = [R("s", 64 + i) for i in range(10)]
    a("%s:", label)
    a("s_cmp_ge_u32 s2, 256\ns_cbranch_scc1 %s_end", label)
    a("s_load_dwordx2 s[4:5], s[0:1], 72")
    a("v_and_b32 %s, 63, v0\nv_lshrrev_b32 %s, 6, v0", lane, t0)
    a("s_and_b32 %s, s2, 7\ns_lshr_b32 %s, s2, 3", s_hq, s_rt)
    a("v_readfirstlane_b32 %s, %s", s_w, t0)
    a("s_mov_b32 s6, %d\ns_mov_b32 s7, 0x00020000", WS_SIZE)
    a("s_lshl_b32 %s, %s, 2\ns_add_u32 %s, %s, %s", s_head, s_hq, s_head, s_head, s_w)
    a("s_lshl_b32 %s, %s, 1", s_tb, s_rt)
    a("s_sub_i32 %s, 8, %s\ns_max_i32 %s, %s, 0", s_i0, s_tb, s_i0, s_i0)
    a("s_lshl_b32 %s, %s, 10", s_t2, s_head)
    for i in range(10):
        a("s_add_i32 %s, %s, %d\ns_max_i32 %s, %s, 0\ns_lshl_b32 %s, %s, 15\ns_add_u32 %s, %s, %s", s_t, s_tb, i - 8, s_t, s_t, s_t, s_t, s_kb[i], s_t, s_t2)
    a("v_lshlrev_b32 %s, 4, %s", t0, lane)
    a("v_add_u32 %s, %d, %s", t1, 2 << 20, t0)
    a("v_lshrrev_b32 %s, 5, %s\nv_lshlrev_b32 %s, 8, %s", t2, lane, t2, t2)
    a("v_and_b32 %s, 15, %s\nv_lshl_add_u32 %s, %s, 4, %s\nv_add_u32 %s, %d, %s", m, lane, t2, m, t2, t2, WS_V, t2)
    a("v_mov_b32 %s, 0x3f803f80", m)
    for i in range(80): a("v_accvgpr_write_b32 %s, %s", VV[i], m)
    a("s_waitcnt lgkmcnt(0)")
    for u in range(2):
        a("buffer_load_dwordx4 %s, %s, %s, %s offen %s", Q[4 * u:4 * u + 4], t0, sW, s_kb[8 + u], ld)
    order = [8, 7, 6, 5, 4, 3, 2, 1, 0, 9]
    for i in order:
        a("buffer_load_dwordx4 %s, %s, %s, %s offen %s", K[4 * i:4 * i + 4], t1, sW, s_kb[i], ld)
    a("s_mov_b32 exec_lo, 0xffff\ns_mov_b32 exec_hi, 0xffff")
    for i in order:
        for hf in range(2):
            a("buffer_load_dwordx4 %s, %s, %s, %s offen offset:%d %s", VV[8 * i + 4 * hf:8 * i + 4 * hf + 4], t2, sW, s_kb[i], hf * 512, ld)
    a("s_mov_b64 exec, -1")
    a("v_and_b32 %s, 31, %s\nv_lshrrev_b32 %s, 5, %s\nv_lshlrev_b32 %s, 2, %s", m, lane, m2, lane, m2, m2)
    a("v_sub_u32 %s, %s, %s", m, m, m2)
    for r in range(16):
        a("v_cmp_le_i32 %s, %d, %s", msk[r], 8 * (r >> 2) + (r & 3), m)
    a("v_mov_b32 %s, %s", vneg, NEG)
    ool = []
    def setC(C, val):
        for r in range(16):
            a("v_cndmask_b32 %s, %s, %s, %s", C["L"][r], vneg, val, msk[r])
            a("v_cndmask_b32 %s, %s, %s, %s", C["F"][r], val, vneg, msk[r])
            a("v_mov_b32 %s, %s", C["M"][r], val)
    def smfma(u, n, C, buf):
        i = u + 8 - n
        c = C["L"] if n == 0 else (C["F"] if n == 8 else C["M"])
        g = []
        if n >= 1 and i + 1 <= 8:
            lb = "%s_o%d" % (label, len(ool))
            g += ["s_cmp_eq_u32 %s, %d" % (s_i0, i + 1), "s_cbranch_scc1 %s" % lb, "%s_r:" % lb]
            ool.append((lb, C))
        g.append("v_mfma_f32_32x32x16_bf16 %s, %s, %s, %s" % (S[buf], K[4 * i:4 * i + 4], Q[4 * u:4 * u + 4], c))
        return g
    for u in range(2):
        setC(C1, "0")
        if u == 0: a("s_waitcnt vmcnt(20)")
        a.ext(smfma(u, 0, C1, 0)); a.ext(smfma(u, 1, C1, 1))
        a("v_mov_b32 %s, %s\nv_mov_b32 %s, %s", m, vneg, m2, vneg)
        a("s_nop 7")
        for n in range(9):
            if n + 2 < 9: a.ext(smfma(u, n + 2, C1, (n + 2) % 3))
            else: a("s_nop 7\ns_nop 7")
            s = S[n % 3]
            for r in range(0, 16, 4):
                a("v_max3_f32 %s, %s, %s, %s", m, m, s[r], s[r + 1])
                a("v_max3_f32 %s, %s, %s, %s", m2, m2, s[r + 2], s[r + 3])
        a("v_max_f32 %s, %s, %s\nv_mov_b32 %s, %s\ns_nop 1", m, m, m2, m2, m)
        a("v_mov_b32 %s, %s\ns_nop 1", m2, m)
        a("v_permlane32_swap_b32 %s, %s", m, m2)
        a("v_max_f32 %s, %s, %s", m, m, m2)
        a("v_mul_f32 %s, -1.0, %s", m, m)
        setC(C2, m)
        if u == 0: a("s_waitcnt vmcnt(0)")
        a("s_nop 1")
        a.ext(smfma(u, 0, C2, 0))
        a("s_nop 7\ns_nop 7")
        for n in range(9):
            i = u + 8 - n
            if n + 1 < 9: a.ext(smfma(u, n + 1, C2, (n + 1) % 2))
            s = S[n % 2]
            for hf in range(2):
                for r in range(8): a("v_exp_f32 %s, %s", s[8 * hf + r], s[8 * hf + r])
                for r in range(4): a("v_cvt_pk_bf16_f32 %s, %s, %s", P[4 * hf + r], s[8 * hf + 2 * r], s[8 * hf + 2 * r + 1])
                a("s_nop 1")
                a("v_mfma_f32_32x32x16_bf16 %s, %s, %s, %s", O, VV[8 * i + 4 * hf:8 * i + 4 * hf + 4], P[4 * hf:4 * hf + 4], "0" if n == 0 and hf == 0 else str(O))
        a("s_nop 7\ns_nop 7")
        a("v_rcp_f32 %s, %s\ns_nop 0", m, O[8])
        for r in range(8): a("v_mul_f32 %s, %s, %s", O[r], O[r], m)
        for r in range(4): a("v_cvt_pk_bf16_f32 %s, %s, %s", P[r], O[2 * r], O[2 * r + 1])
        a("s_add_u32 %s, %s, %d\ns_mul_i32 %s, %s, %d\ns_add_u32 %s, %s, %s\ns_add_u32 %s, %s, %d", s_t, s_tb, u, s_t, s_t, 144 * 1024, s_t, s_t, s_t2, s_t, s_t, WS_AF)
        a("buffer_store_dwordx4 %s, %s, %s, %s offen %s", P[0:4], t0, sW, s_t, sc)
        a("s_nop 1")
    a("%s_end:\ns_endpgm", label)
    for lb, C in ool:
        a("%s:", lb)
        a("s_nop 7\ns_nop 7")
        for r in range(16): a("v_mov_b32 %s, %s\nv_mov_b32 %s, %s", C["M"][r], vneg, C["F"][r], vneg)
        a("s_nop 1\ns_branch %s_r", lb)
    return dict(vgpr=256 + 120, accum=256, lds=0)
```

```python
from asmlib import *

WS_QK = 0
WS_V  = 4 << 20
WS_AF = 8 << 20
WS_SIZE = 18 << 20
QSCALE = 0.25 * 1.4426950408889634

import struct
def f2u(f): return struct.unpack("<I", struct.pack("<f", f))[0]

WST = 20480
XB0 = 61440
XW = 24576

def gen_k1(a, label, opt):
    sc = opt.get("st_flags", "")
    mapping = opt.get("map1", "4x8")
    V = Alloc("v", 1, 96)
    acc = R("v", 96, 160)
    def ACC(nb, tb): return acc[(nb * 2 + tb) * 16:(nb * 2 + tb) * 16 + 16]
    wf = [V(20, 4), R("a", 0, 20)]
    xf = [V(8, 4), V(8, 4)]
    aG = [[V(), V()] for _ in range(4)]
    aQ = [V() for _ in range(4)]
    aX = [V() for _ in range(4)]
    voX = [V(), V()]; voG = V(); voQ = V()
    ssum = [[V(), V()], [V(), V()]]; ssq = [[V(), V()], [V(), V()]]
    cs = [V() for _ in range(5)]
    lane = V(); t0 = V(); t1 = V(); t2 = V(); t3 = V(); t4 = V(); t5 = V()
    sX, sG, sU, sQ, sW = R("s", 4, 4), R("s", 8, 4), R("s", 12, 4), R("s", 16, 4), R("s", 20, 4)
    s_w, s_rt, s_ct, s_stride, s_col, s_w2048, s_w1024, s_xb, s_t, s_t2, s_ones = [R("s", 32 + i) for i in range(11)]
    s_i = [R("s", 48 + i) for i in range(8)]
    stamps = []
    def stamp():
        if opt.get("stamp") is None: return
        i = len(stamps); stamps.append(i)
        a("s_memtime s[%d:%d]" % (60 + 2 * i, 61 + 2 * i))
    def dump_stamps(tag):
        if opt.get("stamp") is None: return
        a("s_waitcnt vmcnt(0)")
        stamp()
        a("s_memrealtime s[96:97]")
        a("s_load_dwordx2 s[4:5], s[0:1], 64\ns_mov_b32 s6, 256\ns_mov_b32 s7, 0x00020000")
        a("s_waitcnt lgkmcnt(0)")
        a("s_cmp_lg_u32 %s, 0\ns_cbranch_scc1 %s_sk%s", s_w, label, tag)
        a("s_mov_b32 %s, 0", s_t2)
        for k, wg in enumerate(opt["stamp"]):
            a("s_cmp_eq_u32 s2, %d\ns_cselect_b32 %s, %d, %s", wg, s_t2, 1 + k * 64, s_t2)
        a("s_cmp_eq_u32 %s, 0\ns_cbranch_scc1 %s_sk%s", s_t2, label, tag)
        a("s_sub_u32 %s, %s, 1", s_t2, s_t2)
        a("v_mov_b32 v1, 0")
        for i in range(1, len(stamps)):
            a("s_sub_u32 %s, s%d, s60\nv_mov_b32 v2, %s", s_t, 60 + 2 * i, s_t)
            a("buffer_store_dword v2, v1, s[4:7], %s offen offset:%d", s_t2, 4 * (i - 1))
        a("v_mov_b32 v2, s94\nbuffer_store_dword v2, v1, s[4:7], %s offen offset:56", s_t2)
        a("v_mov_b32 v2, s96\nbuffer_store_dword v2, v1, s[4:7], %s offen offset:60", s_t2)
        a("%s_sk%s:", label, tag)
    a("%s:", label)
    stamp()
    if opt.get("stamp") is not None: a("s_memrealtime s[94:95]")
    a("s_cmp_ge_u32 s2, 256\ns_cbranch_scc1 %s_end", label)
    a("s_load_dwordx4 s[24:27], s[0:1], 0")
    a("s_load_dwordx4 s[28:31], s[0:1], 32")
    a("s_load_dwordx2 s[20:21], s[0:1], 72")
    a("v_and_b32 %s, 63, v0", lane)
    a("v_lshrrev_b32 %s, 6, v0", t0)
    a("s_and_b32 %s, s2, 7\ns_lshr_b32 %s, s2, 3", s_t, s_t2)
    a("v_readfirstlane_b32 %s, %s", s_w, t0)
    if mapping == "4x8":
        a("s_and_b32 %s, %s, 1\ns_lshl_b32 %s, %s, 2", s_rt, s_t, s_rt, s_rt)
        a("s_and_b32 %s, %s, 3\ns_add_u32 %s, %s, %s", s_ct, s_t2, s_rt, s_rt, s_ct)
        a("s_lshr_b32 %s, %s, 1\ns_lshl_b32 %s, %s, 3", s_ct, s_t, s_ct, s_ct)
        a("s_lshr_b32 %s, %s, 2\ns_add_u32 %s, %s, %s", s_t2, s_t2, s_ct, s_ct, s_t2)
    elif mapping == "2x16":
        a("s_and_b32 %s, %s, 3\ns_lshl_b32 %s, %s, 1", s_rt, s_t, s_rt, s_rt)
        a("s_and_b32 %s, %s, 1\ns_add_u32 %s, %s, %s", s_ct, s_t2, s_rt, s_rt, s_ct)
        a("s_lshr_b32 %s, %s, 2\ns_lshl_b32 %s, %s, 4", s_ct, s_t, s_ct, s_ct)
        a("s_lshr_b32 %s, %s, 1\ns_add_u32 %s, %s, %s", s_t2, s_t2, s_ct, s_ct, s_t2)
    else:
        a("s_mov_b32 %s, %s\ns_mov_b32 %s, %s", s_rt, s_t, s_ct, s_t2)
    a("s_lshl_b32 %s, %s, 11\ns_lshl_b32 %s, %s, 10", s_w2048, s_w, s_w1024, s_w)
    a("s_mul_i32 %s, %s, %d\ns_add_u32 %s, %s, %d", s_xb, s_w, XW, s_xb, s_xb, XB0)
    a("s_mov_b32 %s, 0x3f803f80", s_ones)
    a("s_lshl_b32 %s, %s, 7", s_col, s_ct)
    a("s_lshl_b32 %s, %s, 8\ns_sub_u32 %s, %s, %d", s_t, s_ct, s_t, s_t, 28 * 256 - 2048)
    a("s_cmp_ge_u32 %s, 28", s_ct)
    a("s_cselect_b32 %s, %s, %s", s_col, s_t, s_col)
    a("s_movk_i32 %s, 3584\ns_cselect_b32 %s, 3072, %s", s_stride, s_stride, s_stride)
    a("s_lshl_b32 %s, %s, 18\ns_lshl_b32 %s, %s, 16\ns_add_u32 %s, %s, %s", s_t, s_rt, s_t2, s_w, s_i[0], s_t, s_t2)
    for i in range(1, 8): a("s_add_u32 %s, %s, %d", s_i[i], s_i[0], i * 8192)
    a("v_lshrrev_b32 %s, 3, %s", t0, lane)
    a("v_and_b32 %s, 7, %s", t1, lane)
    a("v_lshrrev_b32 %s, 4, %s", t2, lane)
    a("v_xor_b32 %s, %s, %s", t3, t1, t2)
    a("v_lshlrev_b32 %s, 4, %s", t3, t3)
    a("v_lshl_add_u32 %s, %s, 10, %s", voX[0], t0, t3)
    a("v_xor_b32 %s, 64, %s", voX[1], voX[0])
    a("v_and_b32 %s, 1, %s\nv_lshlrev_b32 %s, 2, %s", t3, t2, t3, t3)
    a("v_xor_b32 %s, %s, %s\nv_lshlrev_b32 %s, 4, %s", t3, t1, t3, t3, t3)
    a("s_lshl_b32 %s, %s, 4", s_t, s_w)
    a("v_add_u32 %s, %s, %s", t4, s_t, t0)
    a("v_mul_lo_u32 %s, %s, %s", t4, t4, s_stride)
    a("v_add3_u32 %s, %s, %s, %s", voG, t4, t3, s_col)
    a("v_lshrrev_b32 %s, 2, %s\nv_add_u32 %s, %s, %s", t4, lane, t4, s_t, t4)
    a("v_mul_u32_u24 %s, 3072, %s", t4, t4)
    a("v_and_b32 %s, 3, %s\nv_lshlrev_b32 %s, 4, %s", t3, lane, t3, t3)
    a("s_lshl_b32 %s, %s, 6", s_t, s_ct)
    a("v_add3_u32 %s, %s, %s, %s", voQ, t4, t3, s_t)
    a("s_waitcnt lgkmcnt(0)")
    a("s_mov_b32 s4, s24\ns_mov_b32 s5, s25\ns_mov_b32 s6, 0x200000\ns_mov_b32 s7, 0x00020000")
    a("s_mov_b32 s16, s26\ns_mov_b32 s17, s27\ns_mov_b32 s18, %d\ns_mov_b32 s19, 0x00020000", 512 * 3072)
    a("s_add_u32 %s, s26, 128\ns_addc_u32 %s, s27, 0", s_t, s_t2)
    a("s_cmp_ge_u32 %s, 28", s_ct)
    a("s_cselect_b32 s8, s26, s28\ns_cselect_b32 s9, s27, s29")
    a("s_cselect_b32 s12, %s, s30\ns_cselect_b32 s13, %s, s31", s_t, s_t2)
    a("s_mov_b32 s14, %d", 512 * 3584)
    a("s_cselect_b32 s10, %d, s14\ns_mov_b32 s11, 0x00020000", 512 * 3072)
    a("s_cselect_b32 s14, %d, s14\ns_mov_b32 s15, 0x00020000", 512 * 3072 - 128)
    a("s_mov_b32 s22, %d\ns_mov_b32 s23, 0x00020000", WS_SIZE)

    def dma(c):
        st = c % 3
        g = []
        for j in range(2):
            g.append(["s_mul_i32 %s, %s, %d" % (s_t, s_stride, 64 * c + 8 * j),
                      "s_add_u32 m0, %s, %d" % (s_w2048, st * WST + j * 1024), "s_nop 0",
                      "buffer_load_dwordx4 %s, %s, %s offen lds" % (voG, sG, s_t)])
            g.append(["s_add_u32 m0, %s, %d" % (s_w2048, st * WST + 8192 + j * 1024), "s_nop 0",
                      "buffer_load_dwordx4 %s, %s, %s offen lds" % (voG, sU, s_t)])
        g.append(["s_add_u32 m0, %s, %d" % (s_w1024, st * WST + 16384),
                  "s_mov_b32 %s, %d" % (s_t, 64 * c * 3072),
                  "buffer_load_dwordx4 %s, %s, %s offen lds" % (voQ, sQ, s_t)])
        for i in range(8):
            g.append(["s_add_u32 m0, %s, %d" % (s_xb, st * 8192 + i * 1024 - c * 128), "s_nop 0",
                      "buffer_load_dwordx4 %s, %s, %s offen offset:%d lds" % (voX[i & 1], sX, s_i[i], c * 128)])
        return g
    for c in range(3):
        for g in dma(c): a.ext(g)
    a("v_lshrrev_b32 %s, 5, %s", t0, lane)
    a("v_bfe_u32 %s, %s, 2, 2", t1, lane)
    a("v_bfe_u32 %s, %s, 4, 1", t2, lane)
    a("v_and_b32 %s, 3, %s", t3, lane)
    a("v_lshlrev_b32 %s, 3, %s\nv_lshl_add_u32 %s, %s, 5, %s", t3, t3, t3, t2, t3)
    a("v_lshlrev_b32 %s, 10, %s\nv_lshl_add_u32 %s, %s, 7, %s\nv_add_u32 %s, %s, %s", t4, t0, t4, t1, t4, t4, t4, t3)
    a("v_lshrrev_b32 %s, 1, %s\nv_lshl_add_u32 %s, %s, 6, %s", t5, t1, t4, t5, t4)
    a("v_lshlrev_b32 %s, 9, %s\nv_lshl_add_u32 %s, %s, 6, %s\nv_add_u32 %s, %s, %s", t5, t0, t5, t1, t5, t5, t5, t3)
    for sg in range(4):
        a("s_add_u32 %s, %s, %d\ns_and_b32 %s, %s, 3", s_t, s_w, sg, s_t, s_t)
        a("s_lshl_b32 %s, %s, 11", s_t2, s_t)
        a("v_add_u32 %s, %s, %s", aG[sg][0], s_t2, t4)
        a("v_xor_b32 %s, 64, %s", aG[sg][1], aG[sg][0])
        a("s_lshl_b32 %s, %s, 10", s_t2, s_t)
        a("v_add_u32 %s, %s, %s", aQ[sg], s_t2, t5)
    a("v_and_b32 %s, 31, %s", t1, lane)
    a("v_bfe_u32 %s, %s, 1, 3", t2, lane)
    a("v_lshlrev_b32 %s, 7, %s\nv_add_u32 %s, %s, %s", t1, t1, t1, s_xb, t1)
    for sg in range(4):
        a("s_add_u32 %s, %s, %d\ns_and_b32 %s, %s, 3\ns_lshl_b32 %s, %s, 1", s_t, s_w, sg, s_t, s_t, s_t, s_t)
        a("v_add_u32 %s, %s, %s\nv_xor_b32 %s, %s, %s", t3, s_t, t0, t3, t3, t2)
        a("v_lshl_add_u32 %s, %s, 4, %s", aX[sg], t3, t1)
    for r in ssum[0] + ssum[1] + ssq[0] + ssq[1] + cs: a("v_mov_b32 %s, 0", r)

    def reads(c, sg):
        st = c % 3; p = sg & 1
        g = []
        for tb in range(2):
            g.append("ds_read_b128 %s, %s offset:%d" % (xf[p][tb * 4:tb * 4 + 4], aX[sg], st * 8192 + tb * 4096))
        for nb in range(5):
            for j in range(2):
                if nb < 4: ad, off = aG[sg][nb & 1], st * WST + (nb >> 1) * 8192 + j * 512
                else: ad, off = aQ[sg], st * WST + 16384 + j * 256
                g.append("ds_read_b64_tr_b16 %s, %s offset:%d" % (wf[p][nb * 4 + 2 * j:nb * 4 + 2 * j + 2], ad, off))
        return g
    def dots(sg):
        p = sg & 1
        g = []
        for i in range(4):
            for tb in range(2):
                g.append("v_dot2c_f32_bf16 %s, %s, %s" % (ssum[tb][i & 1], s_ones, xf[p][tb * 4 + i]))
                g.append("v_dot2c_f32_bf16 %s, %s, %s" % (ssq[tb][i & 1], xf[p][tb * 4 + i], xf[p][tb * 4 + i]))
        if sg == 0:
            c2 = []
            for i in range(4):
                for nb in range(5):
                    c2.append("v_dot2c_f32_bf16 %s, %s, %s" % (cs[nb], s_ones, wf[p][nb * 4 + i]))
            g = merge(g, c2)
        return g
    def mfmas(p, typeB, first, W=None, X=None):
        g = []
        W = W or wf[p]; X = X or xf[p]
        for nb in range(5):
            for tb in range(2):
                A, B = W[nb * 4:nb * 4 + 4], X[tb * 4:tb * 4 + 4]
                if typeB and nb < 4: A, B = B, A
                g.append("v_mfma_f32_32x32x16_bf16 %s, %s, %s, %s" % (ACC(nb, tb), A, B, "0" if first else str(ACC(nb, tb))))
        return g

    stamp()
    a("s_waitcnt vmcnt(26)\ns_barrier")
    stamp()
    a.ext(reads(0, 0))
    a("s_cmp_ge_u32 %s, 28\ns_cbranch_scc1 %s_B", s_ct, label)
    for typeB in (False, True):
        if typeB: a("%s_B:", label)
        del stamps[3:]
        for c in range(8):
            if c: stamp()
            for sg in range(4):
                a("s_waitcnt lgkmcnt(0)")
                m = mfmas(sg & 1, typeB, c == 0 and sg == 0)
                d = dots(sg) if not opt.get("nodot") else []
                if sg < 3:
                    rd = reads(c, sg + 1)
                    body = interleave(m, rd, per=2)
                    body = []
                    k = 0; kd_ = 0
                    for i, x in enumerate(m):
                        body.append(x)
                        for _ in range(2):
                            if k < len(rd): body.append(rd[k]); k += 1
                        tgt = (len(d) * (i + 1) + 9) // 10
                        while kd_ < tgt: body.append(d[kd_]); kd_ += 1
                    a.ext(body)
                else:
                    if c < 7:
                        rd = reads(c + 1, 0)
                        dm = dma(c + 3) if c + 3 < 8 else []
                        body = []
                        k = 0; kd_ = 0; km = 0
                        for i, x in enumerate(m):
                            body.append(x)
                            if i == 1:
                                body.append("s_waitcnt vmcnt(%d)" % (13 if c + 2 < 8 else 0))
                                body.append("s_barrier")
                            if i >= 1:
                                for _ in range(3):
                                    if k < len(rd): body.append(rd[k]); k += 1
                            tgt = (len(d) * (i + 1) + 9) // 10
                            while kd_ < tgt: body.append(d[kd_]); kd_ += 1
                            if i >= 3:
                                for _ in range(2):
                                    if km < len(dm): body.extend(dm[km]); km += 1
                        assert km == len(dm) and k == len(rd)
                        a.ext(body)
                    else:
                        a.ext(interleave(m, d))
        stamp()
        a("v_lshlrev_b32 %s, 2, %s", t0, lane)
        a("s_mul_i32 %s, %s, 1280", s_t, s_w)
        a("v_add_u32 %s, %s, %s", t1, s_t, t0)
        for nb in range(5): a("ds_write_b32 %s, %s offset:%d", t1, cs[nb], nb * 256)
        mean = [ssum[0][0], ssum[1][0]]; rstd = [ssq[0][0], ssq[1][0]]
        for tb in range(2):
            for arr in (ssum, ssq):
                x0, x1 = arr[tb]
                a("v_add_f32 %s, %s, %s", x0, x0, x1)
                a("v_mov_b32 %s, %s", x1, x0)
                a("s_nop 1")
                a("v_permlane32_swap_b32 %s, %s", x0, x1)
                a("v_add_f32 %s, %s, %s", x0, x0, x1)
            a("v_mul_f32 %s, %s, %s", mean[tb], "0x%08x" % f2u(-1.0 / 512), mean[tb])
            a("v_mul_f32 %s, %s, %s", t2, mean[tb], mean[tb])
            a("v_mul_f32 %s, %s, %s", rstd[tb], "0x%08x" % f2u(1.0 / 512), rstd[tb])
            a("v_sub_f32 %s, %s, %s", rstd[tb], rstd[tb], t2)
            a("v_max_f32 %s, 0, %s", rstd[tb], rstd[tb])
            a("v_add_f32 %s, %s, %s", rstd[tb], "0x%08x" % f2u(1e-5), rstd[tb])
            a("v_rsq_f32 %s, %s", rstd[tb], rstd[tb])
        a("s_waitcnt lgkmcnt(0)\ns_barrier")
        W0 = wf[0]
        for nb in range(5):
            for w in range(4):
                a("ds_read_b32 %s, %s offset:%d", W0[nb * 4 + w], t0, w * 1280 + nb * 256)
        X0 = xf[0]
        for tb in range(2):
            a("v_cvt_pk_bf16_f32 %s, %s, 0", X0[tb * 4 + 1], mean[tb])
            a("v_lshlrev_b32 %s, 16, %s", t2, X0[tb * 4 + 1])
            a("v_sub_f32 %s, %s, %s", t2, mean[tb], t2)
            a("v_cvt_pk_bf16_f32 %s, %s, %s", X0[tb * 4], mean[tb], t2)
            a("v_mov_b32 %s, 0\nv_mov_b32 %s, 0", X0[tb * 4 + 2], X0[tb * 4 + 3])
        if typeB:
            a("s_lshl_b32 %s, %s, 8", s_t, s_w)
            a("v_and_b32 %s, 31, %s\nv_lshlrev_b32 %s, 2, %s\nv_add_u32 %s, %s, %s", t3, lane, t3, t3, t3, s_t, t3)
            for tb in range(2): a("ds_write_b32 %s, %s offset:%d", t3, rstd[tb], 8192 + tb * 128)
        for nb in range(5):
            a("s_waitcnt lgkmcnt(%d)", min(15, 4 * (4 - nb) + (2 if typeB else 0)))
            r0, r1, r2, r3 = [W0[nb * 4 + i] for i in range(4)]
            a("v_add_f32 %s, %s, %s\nv_add_f32 %s, %s, %s\nv_add_f32 %s, %s, %s", r0, r0, r1, r2, r2, r3, r2, r0, r2)
            a("v_cvt_pk_bf16_f32 %s, %s, %s", r0, r2, r2)
            a("v_lshlrev_b32 %s, 16, %s", r1, r0)
            a("v_sub_f32 %s, %s, %s", r1, r2, r1)
            a("v_cvt_pk_bf16_f32 %s, %s, 0", r1, r1)
            a("v_mov_b32 %s, 0\nv_mov_b32 %s, 0", r2, r3)
        a("s_nop 1")
        a.ext(mfmas(0, typeB, False))
        a("s_lshl_b32 %s, %s, 3\ns_lshl_b32 %s, %s, 1\ns_add_u32 %s, %s, %s", s_t, s_rt, s_t2, s_w, s_i[0], s_t, s_t2)
        a("v_lshlrev_b32 %s, 4, %s", t0, lane)
        a("s_lshr_b32 %s, %s, 4\ns_lshl_b32 %s, %s, 21", s_t, s_ct, s_t, s_t)
        a("s_lshl_b32 %s, %s, 15\ns_add_u32 %s, %s, %s", s_t2, s_i[0], s_t, s_t, s_t2)
        a("s_and_b32 %s, %s, 15\ns_lshl_b32 %s, %s, 11\ns_add_u32 %s, %s, %s", s_t2, s_ct, s_t2, s_t2, s_i[1], s_t, s_t2)
        a("s_add_u32 %s, %s, %d", s_i[2], s_i[1], 32768)
        a("s_cmp_lt_u32 %s, 16\ns_cselect_b32 %s, 0x%08x, 1.0", s_ct, s_t, f2u(QSCALE))
        sc2 = [R("v", xf[1].b, 2), R("v", xf[1].b + 2, 2)]
        if not typeB:
            a("s_mul_i32 %s, %s, %d\ns_lshl_b32 %s, %s, 12\ns_add_u32 %s, %s, %s", s_i[3], s_i[0], 144 * 1024, s_t2, s_ct, s_i[3], s_i[3], s_t2)
            a("s_add_u32 %s, %s, %d", s_i[3], s_i[3], WS_AF + 32 * 1024)
            a("s_add_u32 %s, %s, %d", s_i[4], s_i[3], 144 * 1024)
            for tb in range(2):
                a("v_mul_f32 %s, %s, %s", sc2[tb][0], rstd[tb], rstd[tb])
                a("v_mov_b32 %s, %s", sc2[tb][1], sc2[tb][0])
            a("s_nop 7")
            for nb in range(2):
                for tb in range(2):
                    G, U = ACC(nb, tb), ACC(nb + 2, tb)
                    for i in range(0, 16, 2):
                        a("v_pk_mul_f32 %s, %s, %s", G[i:i + 2], G[i:i + 2], U[i:i + 2])
                    for i in range(0, 16, 2):
                        a("v_pk_mul_f32 %s, %s, %s", G[i:i + 2], G[i:i + 2], sc2[tb])
                    for i in range(0, 16, 2):
                        a("v_cvt_pk_bf16_f32 %s, %s, %s", U[i // 2], G[i], G[i + 1])
                    for hf in range(2):
                        a("buffer_store_dwordx4 %s, %s, %s, %s offen offset:%d %s", U[hf * 4:hf * 4 + 4], t0, sW, s_i[3 + tb], (2 * nb + hf) * 1024, sc)
        else:
            a("v_bfe_u32 %s, %s, 4, 1\nv_lshlrev_b32 %s, 10, %s", t1, lane, t1, t1)
            a("v_lshrrev_b32 %s, 5, %s\nv_lshl_add_u32 %s, %s, 8, %s", t2, lane, t1, t2, t1)
            a("v_and_b32 %s, 15, %s\nv_lshl_add_u32 %s, %s, 4, %s", t2, lane, t1, t2, t1)
            a("s_lshl_b32 %s, %s, 15\ns_sub_u32 %s, %s, 28\ns_lshl_b32 %s, %s, 13\ns_add_u32 %s, %s, %s", s_i[3], s_i[0], s_t2, s_ct, s_t2, s_t2, s_i[3], s_i[3], s_t2)
            a("s_add_u32 %s, %s, %d", s_i[3], s_i[3], WS_V)
            a("s_add_u32 %s, %s, %d", s_i[4], s_i[3], 32768)
            a("s_add_u32 %s, %s, %d", s_i[5], s_i[3], 4096)
            a("s_add_u32 %s, %s, %d", s_i[6], s_i[4], 4096)
            a("s_lshl_b32 %s, %s, 8", s_t2, s_w)
            a("v_lshrrev_b32 %s, 5, %s\nv_lshlrev_b32 %s, 4, %s\nv_add_u32 %s, %s, %s", t2, lane, t2, t2, t2, s_t2, t2)
            RS = wf[0]
            a("s_nop 7")
            for tb in range(2):
                for g in range(4):
                    a("ds_read_b128 %s, %s offset:%d", RS[g * 4:g * 4 + 4], t2, 8192 + tb * 128 + g * 32)
                a("s_waitcnt lgkmcnt(0)")
                for nb in range(4):
                    G = ACC(nb, tb)
                    for i in range(0, 16, 2):
                        a("v_pk_mul_f32 %s, %s, %s", G[i:i + 2], G[i:i + 2], RS[i:i + 2])
                    for i in range(0, 16, 2):
                        a("v_cvt_pk_bf16_f32 %s, %s, %s", G[i // 2], G[i], G[i + 1])
                    for hf in range(2):
                        a("buffer_store_dwordx4 %s, %s, %s, %s offen offset:%d %s", G[hf * 4:hf * 4 + 4], t1, sW, s_i[3 + tb + 2 * (nb >> 1)], (nb & 1) * 2048 + hf * 512, sc)
        for tb in range(2):
            a("v_mul_f32 %s, %s, %s", sc2[tb][0], s_t, rstd[tb])
            a("v_mov_b32 %s, %s", sc2[tb][1], sc2[tb][0])
            G = ACC(4, tb)
            for i in range(0, 16, 2):
                a("v_pk_mul_f32 %s, %s, %s", G[i:i + 2], G[i:i + 2], sc2[tb])
            for i in range(0, 16, 2):
                a("v_cvt_pk_bf16_f32 %s, %s, %s", G[i // 2], G[i], G[i + 1])
            for hf in range(2):
                a("buffer_store_dwordx4 %s, %s, %s, %s offen offset:%d %s", G[hf * 4:hf * 4 + 4], t0, sW, s_i[1 + tb], hf * 1024, sc)
        stamp()
        dump_stamps("AB"[typeB])
        a("s_endpgm")
    a("%s_end:\ns_endpgm", label)
    return dict(vgpr=256 + 20, accum=256, lds=163840)
```

```python
from asmlib import *
from k1 import WS_QK, WS_V, WS_AF, WS_SIZE, f2u

def gen_k3(a, label, opt):
    ld = opt.get("ld_flags", "")
    D = opt.get("k3_depth", 12)
    NS = 20
    V = Alloc("v", 1, 256)
    acc = V(64, 4)
    def ACC(nb, tb): return acc[(nb * 2 + tb) * 16:(nb * 2 + tb) * 16 + 16]
    AF = [V(8, 4) for _ in range(D + 1)]
    WF = [V(8, 4) for _ in range(2)]
    XR = V(8, 4)
    lane, t0, t1, t2, t3, voW, voA, voO = [V() for _ in range(8)]
    aW = [V(), V()]
    sW, sO, sD, sX, sOut = [R("s", 4 + 4 * i, 4) for i in range(5)]
    s_w, s_rt, s_ct, s_t, s_t2, s_lb, s_ao, s_ah, s_wo, s_wd, s_xo = [R("s", 40 + i) for i in range(11)]
    a("%s:", label)
    a("s_cmp_ge_u32 s2, 256\ns_cbranch_scc1 %s_end", label)
    a("s_load_dwordx2 s[4:5], s[0:1], 72")
    a("s_load_dwordx2 s[8:9], s[0:1], 16")
    a("s_load_dwordx2 s[12:13], s[0:1], 48")
    a("s_load_dwordx2 s[16:17], s[0:1], 0")
    a("s_load_dwordx2 s[20:21], s[0:1], 56")
    a("v_and_b32 %s, 63, v0\nv_lshrrev_b32 %s, 6, v0", lane, t0)
    a("s_and_b32 %s, s2, 7\ns_lshr_b32 %s, s2, 3", s_t, s_t2)
    a("v_readfirstlane_b32 %s, %s", s_w, t0)
    mp = opt.get("map3", "8x4")
    if mp == "8x4":
        a("s_lshr_b32 %s, %s, 1\ns_lshl_b32 %s, %s, 3\ns_and_b32 %s, %s, 7\ns_add_u32 %s, %s, %s", s_rt, s_t, s_rt, s_rt, s_ct, s_t2, s_rt, s_rt, s_ct)
        a("s_and_b32 %s, %s, 1\ns_lshl_b32 %s, %s, 2\ns_lshr_b32 %s, %s, 3\ns_add_u32 %s, %s, %s", s_ct, s_t, s_ct, s_ct, s_t2, s_t2, s_ct, s_ct, s_t2)
    else:
        a("s_lshl_b32 %s, %s, 2\ns_and_b32 %s, %s, 3\ns_add_u32 %s, %s, %s", s_rt, s_t, s_ct, s_t2, s_rt, s_rt, s_ct)
        a("s_lshr_b32 %s, %s, 2", s_ct, s_t2)
    a("s_mov_b32 s6, %d\ns_mov_b32 s7, 0x00020000", WS_SIZE)
    a("s_mov_b32 s10, %d\ns_mov_b32 s11, 0x00020000", 512 * 1024)
    a("s_mov_b32 s14, %d\ns_mov_b32 s15, 0x00020000", 1792 * 1024)
    a("s_mov_b32 s18, %d\ns_mov_b32 s19, 0x00020000", 2048 * 1024)
    a("s_mov_b32 s22, %d\ns_mov_b32 s23, 0x00020000", 2048 * 1024)
    a("s_mul_i32 %s, %s, %d", s_lb, s_w, NS * 2048)
    a("s_mul_i32 %s, %s, %d\ns_add_u32 %s, %s, %d", s_t, s_rt, 2 * 144 * 1024, s_t, s_t, WS_AF)
    a("s_lshl_b32 %s, %s, 13\ns_add_u32 %s, %s, %s", s_t2, s_w, s_ao, s_t, s_t2)
    a("s_mul_i32 %s, %s, %d\ns_add_u32 %s, %s, %s\ns_add_u32 %s, %s, %d", s_t2, s_w, 28 * 1024, s_ah, s_t, s_t2, s_ah, s_ah, 32 * 1024)
    a("s_lshl_b32 %s, %s, 17", s_wo, s_w)
    a("s_mul_i32 %s, %s, %d", s_wd, s_w, 448 * 1024)
    a("v_lshlrev_b32 %s, 4, %s", voA, lane)
    a("v_add_u32 %s, %d, %s", voO, 144 * 1024, voA)
    a("v_lshrrev_b32 %s, 3, %s\nv_and_b32 %s, 7, %s\nv_bfe_u32 %s, %s, 4, 1\nv_lshlrev_b32 %s, 2, %s", t0, lane, t1, lane, t2, lane, t2, t2)
    a("v_xor_b32 %s, %s, %s\nv_lshlrev_b32 %s, 4, %s\nv_lshl_add_u32 %s, %s, 10, %s", t2, t1, t2, t2, t2, t2, t0, t2)
    a("s_lshl_b32 %s, %s, 7", s_t, s_ct)
    a("v_add_u32 %s, %s, %s", voW, s_t, t2)
    a("v_lshlrev_b32 %s, 4, %s\nv_lshl_add_u32 %s, %s, 10, %s", t1, t1, t3, t0, t1)
    a("s_lshl_b32 %s, %s, 16\ns_add_u32 %s, %s, %s\ns_lshl_b32 %s, %s, 14\ns_add_u32 %s, %s, %s", s_t2, s_rt, s_xo, s_t, s_t2, s_t2, s_w, s_xo, s_xo, s_t2)
    a("s_waitcnt lgkmcnt(0)")
    def issue(s):
        g = []
        if s < 28: srd, sb, sa, kk = sD, s_wd, s_ah, s
        else: srd, sb, sa, kk = sO, s_wo, s_ao, s - 28
        slot = s % NS
        for j in range(2):
            g.append(["s_add_u32 m0, %s, %d" % (s_lb, slot * 2048 + j * 1024),
                      "s_add_u32 %s, %s, %d" % (s_t, sb, (16 * kk + 8 * j) * 1024),
                      "buffer_load_dwordx4 %s, %s, %s offen lds" % (voW, srd, s_t)])
        F = AF[s % (D + 1)]
        g.append(["s_add_u32 %s, %s, %d" % (s_t, sa, kk * 1024),
                  "buffer_load_dwordx4 %s, %s, %s, %s offen %s" % (F[0:4], voA, sW, s_t, ld)])
        g.append(["buffer_load_dwordx4 %s, %s, %s, %s offen %s" % (F[4:8], voO, sW, s_t, ld)])
        return g
    for p in range(2):
        a("s_add_u32 %s, %s, %d", s_t, s_xo, p * 8192)
        a("buffer_load_dwordx4 %s, %s, %s, %s offen", XR[4 * p:4 * p + 4], t3, sX, s_t)
    for s in range(D):
        for g in issue(s): a.ext(g)
    a("v_lshrrev_b32 %s, 5, %s\nv_bfe_u32 %s, %s, 2, 2\nv_lshl_add_u32 %s, %s, 2, %s\nv_lshlrev_b32 %s, 7, %s", t0, lane, t1, lane, t0, t0, t1, t0, t0)
    a("v_lshrrev_b32 %s, 1, %s\nv_lshl_add_u32 %s, %s, 6, %s", t1, t1, t0, t1, t0)
    a("v_bfe_u32 %s, %s, 4, 1\nv_lshl_add_u32 %s, %s, 5, %s", t1, lane, t0, t1, t0)
    a("v_and_b32 %s, 3, %s\nv_lshl_add_u32 %s, %s, 3, %s", t1, lane, t0, t1, t0)
    a("v_add_u32 %s, %s, %s\nv_xor_b32 %s, 64, %s", aW[0], s_lb, t0, aW[1], aW[0])
    def reads(s):
        slot = s % NS
        return ["ds_read_b64_tr_b16 %s, %s offset:%d" % (WF[s & 1][4 * nb + 2 * j:4 * nb + 2 * j + 2], aW[nb], slot * 2048 + j * 1024) for nb in range(2) for j in range(2)]
    NST = 36
    def vwait(s, issued):
        return "s_waitcnt vmcnt(%d)" % (4 * (issued - 1 - s))
    a(vwait(0, D)); a.ext(reads(0))
    for s in range(NST):
        issued = min(NST, s + D)
        pre = []
        a("s_waitcnt lgkmcnt(0)")
        F = AF[s % (D + 1)]
        m = ["v_mfma_f32_32x32x16_bf16 %s, %s, %s, %s" % (ACC(nb, tb), WF[s & 1][4 * nb:4 * nb + 4], F[4 * tb:4 * tb + 4], "0" if s == 0 else str(ACC(nb, tb))) for nb in range(2) for tb in range(2)]
        fill = []
        if s + 1 < NST:
            fill.append([vwait(s + 1, issued)] + reads(s + 1))
        if s + D < NST:
            fill += issue(s + D)
        a.ext(interleave(m, fill))
    a("s_barrier")
    a("v_and_b32 %s, 31, %s\nv_mul_u32_u24 %s, 272, %s\nv_lshrrev_b32 %s, 5, %s\nv_lshl_add_u32 %s, %s, 4, %s", t0, lane, t0, t0, t1, lane, t0, t1, t0)
    a("s_mul_i32 %s, %s, %d", s_t, s_w, 64 * 272)
    a("v_add_u32 %s, %s, %s", t0, s_t, t0)
    a("s_nop 7\ns_nop 7")
    for tb in range(2):
        for nb in range(2):
            for g in range(4):
                a("ds_write_b128 %s, %s offset:%d", t0, ACC(nb, tb)[4 * g:4 * g + 4], tb * 32 * 272 + (nb * 32 + 8 * g) * 4)
    a("v_lshrrev_b32 %s, 3, %s\nv_mul_u32_u24 %s, 272, %s\nv_and_b32 %s, 7, %s\nv_lshl_add_u32 %s, %s, 5, %s", t0, lane, t0, t0, t1, lane, t0, t1, t0)
    a("s_mul_i32 %s, %s, %d", s_t, s_w, 16 * 272)
    a("v_add_u32 %s, %s, %s", t0, s_t, t0)
    a("s_waitcnt lgkmcnt(0)\ns_barrier")
    for p in range(2):
        for w in range(4):
            for h in range(2):
                a("ds_read_b128 %s, %s offset:%d", acc[(p * 8 + w * 2 + h) * 4:(p * 8 + w * 2 + h) * 4 + 4], t0, w * 64 * 272 + p * 8 * 272 + h * 16)
    for p in range(2):
        a("s_waitcnt lgkmcnt(%d)", 8 * (1 - p))
        b = acc[p * 32:p * 32 + 32]
        for e in range(8):
            a("v_add_f32 %s, %s, %s\nv_add_f32 %s, %s, %s\nv_add_f32 %s, %s, %s", b[e], b[e], b[8 + e], b[16 + e], b[16 + e], b[24 + e], b[e], b[e], b[16 + e])
            xr = XR[4 * p + e // 2]
            if e & 1: a("v_and_b32 %s, 0xffff0000, %s", t1, xr)
            else: a("v_lshlrev_b32 %s, 16, %s", t1, xr)
            a("v_add_f32 %s, %s, %s", b[e], b[e], t1)
        for e in range(4): a("v_cvt_pk_bf16_f32 %s, %s, %s", b[e], b[2 * e], b[2 * e + 1])
        a("s_add_u32 %s, %s, %d", s_t, s_xo, p * 8192)
        a("buffer_store_dwordx4 %s, %s, %s, %s offen", b[0:4], t3, sOut, s_t)
    a("%s_end:\ns_endpgm", label)
    return dict(vgpr=256, accum=256, lds=163840)
```

```python
import sys, json
from asmlib import *
import k1
HEADER = open("cdna_kernels/%s.s.ref" % NAME).read().split("; Override launch")[0]

def build(kernels, opt):
    a = Asm()
    infos = []
    for label, fn, grid in kernels:
        a.L.append(".globl %s\n.p2align 8\n.type %s,@function" % (label, label))
        infos.append(fn(a, label, opt))
    h = HEADER
    if len(kernels) == 1 and kernels[0][0] == NAME + "_kernel":
        h += "; @launch grid=(%d,1,1) block=(%d,1,1) lds=%d\n" % (kernels[0][2], infos[0].get("block", 256), infos[0]["lds"])
    else:
        for (label, fn, grid), inf in zip(kernels, infos):
            h += "; @launch kernel=%s grid=(%d,1,1) block=(%d,1,1) lds=%d\n" % (label, grid, inf.get("block", 256), inf["lds"])
    h += '.amdgcn_target "amdgcn-amd-amdhsa--gfx950"\n.text\n'
    t = '.section .rodata,"a"\n'
    for (label, fn, grid), inf in zip(kernels, infos):
        t += ".p2align 6\n" + kd(label, inf["vgpr"], inf["accum"]) + "\n"
    return h + a.text() + t

if __name__ == "__main__":
    out = sys.argv[1]
    which = sys.argv[2]
    opt = json.loads(sys.argv[3]) if len(sys.argv) > 3 else {}
    ks = []
    for w in which.split(","):
        if w == "k1": ks.append(("k1_kernel", k1.gen_k1, 256))
        elif w == "att":
            import att; ks.append(("att_kernel", att.gen_att, 256))
        elif w == "k3":
            import k3; ks.append(("k3_kernel", k3.gen_k3, 256))
    if len(ks) == 1: ks = [(NAME + "_kernel", ks[0][1], ks[0][2])]
    open(out, "w").write(build(ks, opt))
```

```python
NAME = "parallel_sum__sliding_block__glu_gated_bilinear__prompt"

class Asm:
    def __init__(self):
        self.L = []
    def __call__(self, s, *args):
        if args: s = s % args
        for line in s.split("\n"):
            line = line.strip()
            if line: self.L.append(("    " + line) if not line.endswith(":") else line)
    def ext(self, lst):
        for x in lst: self(x)
    def text(self):
        return "\n".join(self.L) + "\n"

def vr(b, n=1, p="v"):
    return "%s%d" % (p, b) if n == 1 else "%s[%d:%d]" % (p, b, b + n - 1)
def ar(b, n=1): return vr(b, n, "a")
def sr(b, n=1): return vr(b, n, "s")

class R:
    def __init__(self, p, b, n=1): self.p, self.b, self.n = p, b, n
    def __str__(self): return vr(self.b, self.n, self.p)
    def __getitem__(self, i):
        if isinstance(i, slice):
            st = i.start or 0; en = i.stop if i.stop is not None else self.n
            assert 0 <= st < en <= self.n, (st, en, self.n)
            return R(self.p, self.b + st, en - st)
        assert 0 <= i < self.n, (i, self.n)
        return R(self.p, self.b + i, 1)

class Alloc:
    def __init__(self, p, start, limit):
        self.p, self.nxt, self.limit = p, start, limit
    def __call__(self, n=1, align=1):
        if n >= 2 and align < 2: align = 2
        self.nxt = (self.nxt + align - 1) // align * align
        r = R(self.p, self.nxt, n); self.nxt += n
        assert self.nxt <= self.limit, "out of %s regs: %d > %d" % (self.p, self.nxt, self.limit)
        return r

def interleave(main, fill, start=0, per=None, lead=0):
    out = []
    fill = list(fill)
    def put(f):
        if isinstance(f, (list, tuple)): out.extend(f)
        else: out.append(f)
    for f in fill[:lead]: put(f)
    fill = fill[lead:]
    n = len(main) - start
    k = 0
    for i, m in enumerate(main):
        put(m)
        if i >= start:
            if per is None:
                tgt = (len(fill) * (i - start + 1) + n - 1) // n
            else:
                tgt = min(len(fill), per * (i - start + 1))
            while k < tgt:
                put(fill[k]); k += 1
    while k < len(fill):
        put(fill[k]); k += 1
    return out

def merge(*streams):
    items = []
    for si, s in enumerate(streams):
        for i, x in enumerate(s):
            items.append(((i + 0.5) / len(s), si, i, x))
    items.sort(key=lambda t: (t[0], t[1]))
    return [t[3] for t in items]

def kd(label, vgpr, accum, sgpr=102):
    return """.amdhsa_kernel %s
  .amdhsa_next_free_vgpr %d
  .amdhsa_next_free_sgpr %d
  .amdhsa_accum_offset %d
  .amdhsa_group_segment_fixed_size 0
  .amdhsa_kernarg_size 80
  .amdhsa_user_sgpr_count 2
  .amdhsa_user_sgpr_kernarg_segment_ptr 1
  .amdhsa_system_sgpr_workgroup_id_x 1
.end_amdhsa_kernel""" % (label, vgpr, sgpr, accum)

TL_BASE = 32 << 20
class Timeline:
    def __init__(self, a, on, kidx, sb, nmax=15):
        self.a, self.on, self.kidx, self.sb, self.n, self.nmax = a, on, kidx, sb, 0, nmax
    def stamp(self, emit=True):
        if not self.on: return None
        assert self.n < self.nmax
        s = ("s_memtime" if self.on == 2 else "s_memrealtime") + " s[%d:%d]" % (self.sb + 2 * self.n, self.sb + 2 * self.n + 1)
        self.n += 1
        if emit: self.a(s)
        return s
    def dump(self, s_w, tmp=4, v1="v1", v2="v2", wait=True):
        if not self.on: return
        a = self.a
        if wait: a("s_waitcnt vmcnt(0)")
        self.stamp()
        a("s_load_dwordx2 s[%d:%d], s[0:1], 72\ns_mov_b32 s%d, 0x4000000\ns_mov_b32 s%d, 0x00020000", tmp, tmp + 1, tmp + 2, tmp + 3)
        a("s_lshl_b32 s%d, s2, 3\ns_add_u32 s%d, s%d, %s\ns_lshl_b32 s%d, s%d, 6\ns_add_u32 s%d, s%d, %d", tmp + 4, tmp + 4, tmp + 4, s_w, tmp + 4, tmp + 4, tmp + 4, tmp + 4, TL_BASE + self.kidx * 131072)
        a("s_waitcnt lgkmcnt(0)")
        a("v_mov_b32 %s, 0", v1)
        for i in range(self.n):
            a("v_mov_b32 %s, s%d", v2, self.sb + 2 * i)
            a("buffer_store_dword %s, %s, s[%d:%d], s%d offen offset:%d", v2, v1, tmp, tmp + 3, tmp + 4, 4 * i)
        a("v_mov_b32 %s, %d", v2, self.n)
        a("buffer_store_dword %s, %s, s[%d:%d], s%d offen offset:60", v2, v1, tmp, tmp + 3, tmp + 4)
```

```python
from asmlib import *
from k1 import WS_QK, WS_V, WS_AF, WS_SIZE, f2u
NEG = "0xf149f2ca"

def gen_att(a, label, opt):
    ld = opt.get("ld_flags", ""); sc = opt.get("st_flags", "")
    V = Alloc("v", 1, 256); A = Alloc("a", 0, 256)
    K = A(40, 4); VV = A(80, 4)
    Q = V(8, 4)
    S = [V(16, 4) for _ in range(3)]
    C1 = {k: V(16, 4) for k in "LMF"}
    C2 = {k: V(16, 4) for k in "LMF"}
    O = V(16, 4); P = V(8, 4)
    lane, t0, t1, t2, m, m2, vneg = [V() for _ in range(7)]
    sW = R("s", 4, 4)
    s_w, s_rt, s_hq, s_head, s_t, s_t2, s_i0, s_tb = [R("s", 8 + i) for i in range(8)]
    msk = [R("s", 32 + 2 * r, 2) for r in range(16)]
    s_kb = [R("s", 64 + i) for i in range(10)]
    tl = Timeline(a, opt.get("tl"), 1, 76, 10)
    a("%s:", label)
    tl.stamp()
    a("s_cmp_ge_u32 s2, 256\ns_cbranch_scc1 %s_end", label)
    a("s_load_dwordx2 s[4:5], s[0:1], 72")
    a("v_and_b32 %s, 63, v0\nv_lshrrev_b32 %s, 6, v0", lane, t0)
    a("s_and_b32 %s, s2, 7\ns_lshr_b32 %s, s2, 3", s_hq, s_rt)
    a("v_readfirstlane_b32 %s, %s", s_w, t0)
    a("s_mov_b32 s6, %d\ns_mov_b32 s7, 0x00020000", WS_SIZE)
    a("s_lshl_b32 %s, %s, 2\ns_add_u32 %s, %s, %s", s_head, s_hq, s_head, s_head, s_w)
    a("s_lshl_b32 %s, %s, 1", s_tb, s_rt)
    a("s_sub_i32 %s, 8, %s\ns_max_i32 %s, %s, 0", s_i0, s_tb, s_i0, s_i0)
    a("s_lshl_b32 %s, %s, 10", s_t2, s_head)
    for i in range(10):
        a("s_add_i32 %s, %s, %d\ns_max_i32 %s, %s, 0\ns_lshl_b32 %s, %s, 15\ns_add_u32 %s, %s, %s", s_t, s_tb, i - 8, s_t, s_t, s_t, s_t, s_kb[i], s_t, s_t2)
    a("v_lshlrev_b32 %s, 4, %s", t0, lane)
    a("v_add_u32 %s, %d, %s", t1, 2 << 20, t0)
    a("v_lshrrev_b32 %s, 5, %s\nv_lshlrev_b32 %s, 8, %s", t2, lane, t2, t2)
    a("v_and_b32 %s, 15, %s\nv_lshl_add_u32 %s, %s, 4, %s\nv_add_u32 %s, %d, %s", m, lane, t2, m, t2, t2, WS_V, t2)
    a("v_mov_b32 %s, 0x3f803f80", m)
    for i in range(80): a("v_accvgpr_write_b32 %s, %s", VV[i], m)
    a("s_waitcnt lgkmcnt(0)")
    for u in range(2):
        a("buffer_load_dwordx4 %s, %s, %s, %s offen %s", Q[4 * u:4 * u + 4], t0, sW, s_kb[8 + u], ld)
    order = [8, 7, 6, 5, 4, 3, 2, 1, 0, 9]
    for i in order:
        a("buffer_load_dwordx4 %s, %s, %s, %s offen %s", K[4 * i:4 * i + 4], t1, sW, s_kb[i], ld)
    a("s_mov_b32 exec_lo, 0xffff\ns_mov_b32 exec_hi, 0xffff")
    for i in order:
        for hf in range(2):
            a("buffer_load_dwordx4 %s, %s, %s, %s offen offset:%d %s", VV[8 * i + 4 * hf:8 * i + 4 * hf + 4], t2, sW, s_kb[i], hf * 512, ld)
    a("s_mov_b64 exec, -1")
    a("v_and_b32 %s, 31, %s\nv_lshrrev_b32 %s, 5, %s\nv_lshlrev_b32 %s, 2, %s", m, lane, m2, lane, m2, m2)
    a("v_sub_u32 %s, %s, %s", m, m, m2)
    for r in range(16):
        a("v_cmp_le_i32 %s, %d, %s", msk[r], 8 * (r >> 2) + (r & 3), m)
    a("v_mov_b32 %s, %s", vneg, NEG)
    ool = []
    def setC(C, val):
        for r in range(16):
            a("v_cndmask_b32 %s, %s, %s, %s", C["L"][r], vneg, val, msk[r])
            a("v_cndmask_b32 %s, %s, %s, %s", C["F"][r], val, vneg, msk[r])
            a("v_mov_b32 %s, %s", C["M"][r], val)
    def smfma(u, n, C, buf):
        i = u + 8 - n
        c = C["L"] if n == 0 else (C["F"] if n == 8 else C["M"])
        g = []
        if n >= 1 and i + 1 <= 8:
            lb = "%s_o%d" % (label, len(ool))
            g += ["s_cmp_eq_u32 %s, %d" % (s_i0, i + 1), "s_cbranch_scc1 %s" % lb, "%s_r:" % lb]
            ool.append((lb, C))
        g.append("v_mfma_f32_32x32x16_bf16 %s, %s, %s, %s" % (S[buf], K[4 * i:4 * i + 4], Q[4 * u:4 * u + 4], c))
        return g
    for u in range(2):
        setC(C1, "0")
        if u == 0: a("s_waitcnt vmcnt(20)")
        tl.stamp()
        a.ext(smfma(u, 0, C1, 0)); a.ext(smfma(u, 1, C1, 1))
        a("v_mov_b32 %s, %s\nv_mov_b32 %s, %s", m, vneg, m2, vneg)
        a("s_nop 7")
        for n in range(9):
            if n + 2 < 9: a.ext(smfma(u, n + 2, C1, (n + 2) % 3))
            else: a("s_nop 7\ns_nop 7")
            s = S[n % 3]
            for r in range(0, 16, 4):
                a("v_max3_f32 %s, %s, %s, %s", m, m, s[r], s[r + 1])
                a("v_max3_f32 %s, %s, %s, %s", m2, m2, s[r + 2], s[r + 3])
        a("v_max_f32 %s, %s, %s\nv_mov_b32 %s, %s\ns_nop 1", m, m, m2, m2, m)
        a("v_mov_b32 %s, %s\ns_nop 1", m2, m)
        a("v_permlane32_swap_b32 %s, %s", m, m2)
        a("v_max_f32 %s, %s, %s", m, m, m2)
        a("v_mul_f32 %s, -1.0, %s", m, m)
        setC(C2, m)
        if u == 0: a("s_waitcnt vmcnt(0)")
        tl.stamp()
        a("s_nop 1")
        a.ext(smfma(u, 0, C2, 0))
        a("s_nop 7\ns_nop 7")
        for n in range(9):
            i = u + 8 - n
            if n + 1 < 9: a.ext(smfma(u, n + 1, C2, (n + 1) % 2))
            s = S[n % 2]
            for hf in range(2):
                for r in range(8): a("v_exp_f32 %s, %s", s[8 * hf + r], s[8 * hf + r])
                for r in range(4): a("v_cvt_pk_bf16_f32 %s, %s, %s", P[4 * hf + r], s[8 * hf + 2 * r], s[8 * hf + 2 * r + 1])
                a("s_nop 1")
                a("v_mfma_f32_32x32x16_bf16 %s, %s, %s, %s", O, VV[8 * i + 4 * hf:8 * i + 4 * hf + 4], P[4 * hf:4 * hf + 4], "0" if n == 0 and hf == 0 else str(O))
        a("s_nop 7\ns_nop 7")
        a("v_rcp_f32 %s, %s\ns_nop 0", m, O[8])
        for r in range(8): a("v_mul_f32 %s, %s, %s", O[r], O[r], m)
        for r in range(4): a("v_cvt_pk_bf16_f32 %s, %s, %s", P[r], O[2 * r], O[2 * r + 1])
        a("s_add_u32 %s, %s, %d\ns_mul_i32 %s, %s, %d\ns_add_u32 %s, %s, %s\ns_add_u32 %s, %s, %d", s_t, s_tb, u, s_t, s_t, 144 * 1024, s_t, s_t, s_t2, s_t, s_t, WS_AF)
        a("buffer_store_dwordx4 %s, %s, %s, %s offen %s", P[0:4], t0, sW, s_t, sc)
        a("s_nop 1")
    tl.stamp()
    tl.dump(s_w, tmp=16)
    a("%s_end:\ns_endpgm", label)
    for lb, C in ool:
        a("%s:", lb)
        a("s_nop 7\ns_nop 7")
        for r in range(16): a("v_mov_b32 %s, %s\nv_mov_b32 %s, %s", C["M"][r], vneg, C["F"][r], vneg)
        a("s_nop 1\ns_branch %s_r", lb)
    return dict(vgpr=256 + 120, accum=256, lds=0)
```

```python
from asmlib import *
import struct, re
def f2u(f): return struct.unpack("<I", struct.pack("<f", f))[0]
def fx(f): return "0x%08x" % f2u(f)

WS_QK = 0
WS_V  = 4 << 20
WS_AF = 8 << 20
WS_CS = 18 << 20
WS_ST = WS_CS + (512 << 10)
WS_F1 = 19 << 20
WS_F2 = WS_F1 + 4096
WS_SIZE = 20 << 20
QSCALE = 0.25 * 1.4426950408889634
NEG = "0xf149f2ca"
WST = 20480; XB0 = 61440; XW = 24576; SCR = XB0 + 4 * XW
SPIN = 1 << 14

def resolve(lines):
    out = []; ops = []; saved = {}
    for l in lines:
        s = l.strip()
        if s.startswith("@wait "):
            tags = s.split()[1:]
            idx = -1
            for i, t in enumerate(ops):
                if t in tags: idx = i
            if idx < 0: continue
            n = len(ops) - 1 - idx
            out.append("    s_waitcnt vmcnt(%d)" % min(n, 63))
            ops = ops[idx + 1:]
        elif s.startswith("@save "): saved[s.split()[1]] = list(ops)
        elif s.startswith("@restore "): ops = list(saved[s.split()[1]])
        elif s.startswith("@clear"): ops = []
        else:
            m = re.search(r";\s*@vm (\S+)", l)
            if m: ops.append(m.group(1)); l = l[:m.start()].rstrip()
            elif s.startswith(("buffer_", "global_")): ops.append("?")
            if s.startswith("s_waitcnt") and "vmcnt(0)" in s: ops = []
            out.append(l)
    return out

def gen(a0, label, opt):
    a = Asm()
    P_POS = opt.get("pos", 1)
    SC = "sc1"
    ool = Asm()
    V = Alloc("v", 1, 96)
    acc = R("v", 96, 160)
    def ACC(nb, tb): return acc[(nb * 2 + tb) * 16:(nb * 2 + tb) * 16 + 16]
    lane = V(); vl16 = V(); voD = V()
    wf = [V(20, 4), R("a", 0, 20)]
    xf = [V(8, 4), V(8, 4)]
    VO4 = V(4, 4); voX = [VO4[0], VO4[1]]; voG = VO4[2]; voQ = VO4[3]
    aG = [[V(), V()] for _ in range(4)]
    aQ = [V() for _ in range(4)]
    aX = [V() for _ in range(4)]
    PL = V(36, 4)
    t0, t1, t2, t3, t4, t5 = [PL[30 + i] for i in range(6)]
    WD = [R("a", 20 + 8 * s, 8) for s in range(28)]
    sX, sG, sU, sQ, sW, sD, sO, sOut, sDbg = [R("s", 4 + 4 * i, 4) for i in range(9)]
    (s_w, s_rt, s_ct, s_stride, s_w2048, s_w1024, s_xb, s_t, s_t2, s_ones, s_nonce, s_rt2, s_ct2, s_st8, s_wd, s_wo) = [R("s", 40 + i) for i in range(16)]
    s_i = [R("s", 56 + i) for i in range(8)]
    s_cur, s_t3 = R("s", 64), R("s", 65)
    s_m = R("s", 66, 2); s_need = R("s", 68, 2); s_cnt = R("s", 70); s_done = R("s", 71)
    tl = Timeline(a, opt.get("tl"), 0, 72)
    def stamp(n, emit=True):
        if not tl.on: return None
        tl.n = n
        return tl.stamp(emit)
    a("%s:", label)
    stamp(0)
    a("s_cmp_ge_u32 s2, %d\ns_cbranch_scc1 %s_end", 0 if opt.get("empty") else 256, label)
    for srd, off in ((sX, 0), (sQ, 8), (sG, 32), (sU, 40), (sW, 72), (sDbg, 64), (sD, 48), (sO, 16), (sOut, 56)):
        a("s_load_dwordx2 %s, s[0:1], %d", srd[0:2], off)
    a("s_memrealtime %s", s_m)
    a("v_and_b32 %s, 63, v0", lane)
    a("v_lshrrev_b32 %s, 6, v0", t0)
    a("s_and_b32 %s, s2, 7\ns_lshr_b32 %s, s2, 3", s_t, s_t2)
    a("v_readfirstlane_b32 %s, %s", s_w, t0)
    a("s_lshl_b32 %s, %s, 2\ns_and_b32 %s, %s, 3\ns_add_u32 %s, %s, %s", s_rt2, s_t, s_ct, s_t2, s_rt2, s_rt2, s_ct)
    a("s_lshr_b32 %s, %s, 2", s_ct2, s_t2)
    a("s_and_b32 %s, %s, 7", s_rt, s_rt2)
    a("s_lshr_b32 %s, %s, 1\ns_lshl_b32 %s, %s, 3\ns_add_u32 %s, %s, %s", s_ct, s_t, s_ct, s_ct, s_ct, s_ct, s_ct2)
    a("s_lshl_b32 %s, %s, 11\ns_lshl_b32 %s, %s, 10", s_w2048, s_w, s_w1024, s_w)
    a("s_mul_i32 %s, %s, %d\ns_add_u32 %s, %s, %d", s_xb, s_w, XW, s_xb, s_xb, XB0)
    a("s_mov_b32 %s, 0x3f803f80", s_ones)
    s_col = s_t3
    a("s_lshl_b32 %s, %s, 7", s_col, s_ct)
    a("s_lshl_b32 %s, %s, 8\ns_sub_u32 %s, %s, %d", s_t, s_ct, s_t, s_t, 28 * 256 - 2048)
    a("s_cmp_ge_u32 %s, 28", s_ct)
    a("s_cselect_b32 %s, %s, %s", s_col, s_t, s_col)
    a("s_movk_i32 %s, 3584\ns_cselect_b32 %s, 3072, %s", s_stride, s_stride, s_stride)
    a("s_lshl_b32 %s, %s, 3", s_st8, s_stride)
    a("s_lshl_b32 %s, %s, 18\ns_lshl_b32 %s, %s, 16\ns_add_u32 %s, %s, %s", s_t, s_rt, s_t2, s_w, s_i[0], s_t, s_t2)
    for i in range(1, 8): a("s_add_u32 %s, %s, %d", s_i[i], s_i[0], i * 8192)
    a("s_lshl_b32 %s, %s, 13\ns_add_u32 %s, %s, %s\ns_add_u32 %s, %s, %s", s_t2, s_ct, s_t, s_t, s_t2, s_wo, s_t, s_w2048)
    a("v_lshlrev_b32 %s, 4, %s", vl16, lane)
    a("v_lshrrev_b32 %s, 3, %s", t0, lane)
    a("v_and_b32 %s, 7, %s", t1, lane)
    a("v_lshrrev_b32 %s, 4, %s", t2, lane)
    a("v_xor_b32 %s, %s, %s", t3, t1, t2)
    a("v_lshlrev_b32 %s, 4, %s", t3, t3)
    a("v_lshl_add_u32 %s, %s, 10, %s", voX[0], t0, t3)
    a("v_xor_b32 %s, 64, %s", voX[1], voX[0])
    a("v_and_b32 %s, 1, %s\nv_lshlrev_b32 %s, 2, %s", t3, t2, t3, t3)
    a("v_xor_b32 %s, %s, %s\nv_lshlrev_b32 %s, 4, %s", t3, t1, t3, t3, t3)
    if opt.get("dx"): a("s_xor_b32 %s, %s, %d", s_ct2, s_ct2, opt["dx"])
    a("s_lshl_b32 %s, %s, 7", s_t, s_ct2)
    a("v_lshl_add_u32 %s, %s, 10, %s\nv_add_u32 %s, %s, %s", voD, t0, t3, voD, s_t, voD)
    a("s_lshl_b32 %s, %s, 4", s_t, s_w)
    a("v_add_u32 %s, %s, %s", t4, s_t, t0)
    a("v_mul_lo_u32 %s, %s, %s", t4, t4, s_stride)
    a("v_add3_u32 %s, %s, %s, %s", voG, t4, t3, s_col)
    a("v_lshrrev_b32 %s, 2, %s\nv_add_u32 %s, %s, %s", t4, lane, t4, s_t, t4)
    a("v_mul_u32_u24 %s, 3072, %s", t4, t4)
    a("v_and_b32 %s, 3, %s\nv_lshlrev_b32 %s, 4, %s", t3, lane, t3, t3)
    a("s_lshl_b32 %s, %s, 6", s_t, s_ct)
    a("v_add3_u32 %s, %s, %s, %s", voQ, t4, t3, s_t)
    a("s_mov_b32 %s, 0", s_cur)
    def adv(p):
        g = []
        if p == P_POS: g.append("s_mov_b32 %s, %s" % (s_t, s_rt))
        else:
            q = p if p < P_POS else p - 1
            g += ["s_cmp_le_u32 %s, %d" % (s_rt, q), "s_cselect_b32 %s, %d, %d" % (s_t, q + 1, q)]
        g += ["s_sub_i32 %s, %s, %s" % (s_t2, s_t, s_cur), "s_mov_b32 %s, %s" % (s_cur, s_t),
              "s_lshl_b32 %s, %s, 7" % (s_t, s_t2),
              "v_add_u32 %s, %s, %s" % (voX[0], s_t, voX[0]), "v_add_u32 %s, %s, %s" % (voX[1], s_t, voX[1]),
              "s_mul_i32 %s, %s, %d" % (s_t, s_t2, 64 * 3072), "s_lshl_b32 %s, %s, 3" % (s_t2, s_t2),
              "v_add_u32 %s, %s, %s" % (voQ, s_t, voQ),
              "s_mul_i32 %s, %s, %s" % (s_t2, s_t2, s_st8),
              "v_add_u32 %s, %s, %s" % (voG, s_t2, voG)]
        return g
    a.ext(adv(0))
    for srd, n in ((sX, 0x200000), (sQ, 512 * 3072), (sW, WS_SIZE), (sDbg, 256), (sD, 1792 * 1024), (sO, 512 * 1024), (sOut, 0x200000)):
        a("s_mov_b32 %s, %d\ns_mov_b32 %s, 0x00020000", srd[2], n, srd[3])
    a("s_cmp_ge_u32 %s, 28", s_ct)
    a("s_mov_b32 s14, %d", 512 * 3584)
    a("s_cselect_b32 s10, %d, s14\ns_mov_b32 s11, 0x00020000", 512 * 3072)
    a("s_cselect_b32 s14, %d, s14\ns_mov_b32 s15, 0x00020000", 512 * 3072 - 128)
    a("s_waitcnt lgkmcnt(0)")
    a("s_add_u32 %s, s16, 128\ns_addc_u32 %s, s17, 0", s_t, s_t2)
    a("s_cmp_ge_u32 %s, 28", s_ct)
    a("s_cselect_b32 s8, s16, s8\ns_cselect_b32 s9, s17, s9")
    a("s_cselect_b32 s12, %s, s12\ns_cselect_b32 s13, %s, s13", s_t, s_t2)

    def dma(p):
        st = p % 3; tag = " ; @vm d%d" % p
        g = []
        def x(i):
            return ["s_add_u32 m0, %s, %d" % (s_xb, st * 8192 + i * 1024), "s_nop 0",
                    "buffer_load_dwordx4 %s, %s, %s offen lds" % (voX[i & 1], sX, s_i[i]) + tag]
        for j in range(2):
            so = "0" if j == 0 else str(s_st8)
            g.append(["s_add_u32 m0, %s, %d" % (s_w2048, st * WST + j * 1024), "s_nop 0",
                      "buffer_load_dwordx4 %s, %s, %s offen lds" % (voG, sG, so) + tag])
            g.append(["s_add_u32 m0, %s, %d" % (s_w2048, st * WST + 8192 + j * 1024), "s_nop 0",
                      "buffer_load_dwordx4 %s, %s, %s offen lds" % (voG, sU, so) + tag])
        g.append(["s_add_u32 m0, %s, %d" % (s_w1024, st * WST + 16384), "s_nop 0",
                  "buffer_load_dwordx4 %s, %s, 0 offen lds" % (voQ, sQ) + tag])
        for i in range(8): g.append(x(i))
        if p > 0: g[0] = adv(p) + g[0]
        return g
    for g in dma(0): a.ext(g)
    XR0, XR1 = PL[0:4], PL[4:8]
    a("buffer_load_dwordx4 %s, %s, %s, %s offen", XR0, vl16, sX, s_wo)
    a("buffer_load_dwordx4 %s, %s, %s, %s offen offset:1024", XR1, vl16, sX, s_wo)
    a("s_lshl_b32 %s, %s, 4\ns_add_u32 %s, %s, s2\ns_cmp_ge_u32 %s, 16\ns_cbranch_scc1 %s_nn", s_t, s_w, s_t, s_t, s_t, label)
    a("s_mul_i32 %s, %s, 0x9e3779b1\ns_xor_b32 %s, %s, %s\ns_or_b32 %s, %s, 1", s_t, s_m[1], s_t, s_t, s_m[0], s_t, s_t)
    a("v_mov_b32 %s, %s\nv_mov_b32 %s, 0", t0, s_t, t1)
    a("s_mov_b64 exec, 1")
    a("buffer_atomic_cmpswap %s, off, %s, 0 sc1 ; @vm skip", R("v", t0.b, 2), sDbg)
    a("s_mov_b64 exec, -1")
    a("%s_nn:", label)
    a.L.append("@dropskip")
    for g in dma(1): a.ext(g)
    a("v_lshrrev_b32 %s, 5, %s", t0, lane)
    a("v_bfe_u32 %s, %s, 2, 2", t1, lane)
    a("v_bfe_u32 %s, %s, 4, 1", t2, lane)
    a("v_and_b32 %s, 3, %s", t3, lane)
    a("v_lshlrev_b32 %s, 3, %s\nv_lshl_add_u32 %s, %s, 5, %s", t3, t3, t3, t2, t3)
    a("v_lshlrev_b32 %s, 10, %s\nv_lshl_add_u32 %s, %s, 7, %s\nv_add_u32 %s, %s, %s", t4, t0, t4, t1, t4, t4, t4, t3)
    a("v_lshrrev_b32 %s, 1, %s\nv_lshl_add_u32 %s, %s, 6, %s", t5, t1, t4, t5, t4)
    a("v_lshlrev_b32 %s, 9, %s\nv_lshl_add_u32 %s, %s, 6, %s\nv_add_u32 %s, %s, %s", t5, t0, t5, t1, t5, t5, t5, t3)
    for sg in range(4):
        a("s_add_u32 %s, %s, %d\ns_and_b32 %s, %s, 3", s_t, s_w, sg, s_t, s_t)
        a("s_lshl_b32 %s, %s, 11", s_t2, s_t)
        a("v_add_u32 %s, %s, %s", aG[sg][0], s_t2, t4)
        a("v_xor_b32 %s, 64, %s", aG[sg][1], aG[sg][0])
        a("s_lshl_b32 %s, %s, 10", s_t2, s_t)
        a("v_add_u32 %s, %s, %s", aQ[sg], s_t2, t5)
    a("v_and_b32 %s, 31, %s", t1, lane)
    a("v_bfe_u32 %s, %s, 1, 3", t2, lane)
    a("v_lshlrev_b32 %s, 7, %s\nv_add_u32 %s, %s, %s", t1, t1, t1, s_xb, t1)
    for sg in range(4):
        a("s_add_u32 %s, %s, %d\ns_and_b32 %s, %s, 3\ns_lshl_b32 %s, %s, 1", s_t, s_w, sg, s_t, s_t, s_t, s_t)
        a("v_add_u32 %s, %s, %s\nv_xor_b32 %s, %s, %s", t3, s_t, t0, t3, t3, t2)
        a("v_lshl_add_u32 %s, %s, 4, %s", aX[sg], t3, t1)
    ss = [PL[8 + i] for i in range(4)]
    SG = PL[12:16]; cs = [PL[16 + i] for i in range(5)]; CQ = PL[16:20]; vn = PL[21]
    for r in ss + cs: a("v_mov_b32 %s, 0", r)
    a("s_mul_i32 %s, %s, %d", s_wd, s_w, 448 * 1024)

    def reads(c, sg):
        st = c % 3; p = sg & 1
        g = []
        for tb in range(2):
            g.append("ds_read_b128 %s, %s offset:%d" % (xf[p][tb * 4:tb * 4 + 4], aX[sg], st * 8192 + tb * 4096))
        for nb in range(5):
            for j in range(2):
                if nb < 4: ad, off = aG[sg][nb & 1], st * WST + (nb >> 1) * 8192 + j * 512
                else: ad, off = aQ[sg], st * WST + 16384 + j * 256
                g.append("ds_read_b64_tr_b16 %s, %s offset:%d" % (wf[p][nb * 4 + 2 * j:nb * 4 + 2 * j + 2], ad, off))
        return g
    def mfmas(p, typeB, first):
        g = []
        for nb in range(5):
            for tb in range(2):
                A, B = wf[p][nb * 4:nb * 4 + 4], xf[p][tb * 4:tb * 4 + 4]
                if typeB and nb < 4: A, B = B, A
                g.append("v_mfma_f32_32x32x16_bf16 %s, %s, %s, %s" % (ACC(nb, tb), A, B, "0" if first else str(ACC(nb, tb))))
        return g
    def wdload(k):
        s, j = k >> 1, k & 1
        return ["s_add_u32 %s, %s, %d" % (s_t3, s_wd, (16 * s + 8 * j) * 1024),
                "buffer_load_dwordx4 %s, %s, %s, %s offen ; @vm wd%d" % (WD[s][4 * j:4 * j + 4], voD, sD, s_t3, s)]
    WO_OFF = [16384 + (k & 7) * 1024 if k < 8 else (k & 7) * 1024 for k in range(16)]
    def woload(k):
        return ["s_add_u32 m0, %s, %d" % (s_xb, WO_OFF[k]), "s_add_u32 %s, %s, %d" % (s_t3, s_wo, k * 8192),
                "buffer_load_dwordx4 %s, %s, %s offen lds ; @vm wo" % (voD, sO, s_t3)]

    stamp(1)
    a("@wait d0\ns_barrier")
    stamp(2)
    a.ext(reads(0, 0))
    a("@save br")
    a("s_cmp_ge_u32 %s, 28\ns_cbranch_scc1 %s_B", s_ct, label)
    SL = [PL[0:4], PL[4:8]]; C0, C1 = PL[8:12], PL[12:16]
    AB = PL[16:34]; T4, T5 = PL[34], PL[35]
    for typeB in (False, True):
        tg = "AB"[typeB]
        if typeB: a("%s_B:\n@restore br", label)
        fill = [[] for _ in range(320)]
        def put(g0, groups, per=2):
            for k, gr in enumerate(groups):
                fill[g0 + k // per].append(gr if isinstance(gr, list) else [gr])
            return g0 + (len(groups) + per - 1) // per
        st = ["@wait st"]
        for i in range(4):
            st += ["v_dot2c_f32_bf16 %s, %s, %s" % (ss[0], s_ones, XR0[i]), "v_dot2c_f32_bf16 %s, %s, %s" % (ss[1], XR0[i], XR0[i]),
                   "v_dot2c_f32_bf16 %s, %s, %s" % (ss[2], s_ones, XR1[i]), "v_dot2c_f32_bf16 %s, %s, %s" % (ss[3], XR1[i], XR1[i])]
        st += [["s_nop 2", "v_permlane32_swap_b32 %s, %s" % (ss[0], ss[2])], "v_permlane32_swap_b32 %s, %s" % (ss[1], ss[3]),
               "v_add_f32 %s, %s, %s" % (ss[0], ss[0], ss[2]), "v_add_f32 %s, %s, %s" % (ss[1], ss[1], ss[3]),
               ["s_nop 1", "v_permlane16_swap_b32 %s, %s" % (ss[0], ss[1])],
               "v_add_f32 %s, %s, %s" % (ss[0], ss[0], ss[1])]
        for sh in (8, 4, 2, 1):
            st.append(["s_nop 1", "v_add_f32_dpp %s, %s, %s row_ror:%d row_mask:0xf bank_mask:0xf" % (ss[0], ss[0], ss[0], sh)])
        st += ["v_mov_b32 %s, %s" % (ss[1], ss[0]), ["s_nop 1", "v_permlane16_swap_b32 %s, %s" % (ss[0], ss[1])],
               "v_mul_f32 %s, %s, %s" % (SG[0], fx(-1.0 / 512), ss[0]),
               "v_mul_f32 %s, %s, %s" % (ss[1], fx(1.0 / 512), ss[1]),
               "v_fma_f32 %s, -%s, %s, %s" % (ss[1], SG[0], SG[0], ss[1]),
               "v_max_f32 %s, 0, %s" % (ss[1], ss[1]),
               "v_add_f32 %s, %s, %s" % (SG[2], fx(1e-5), ss[1]),
               "v_rsq_f32 %s, %s" % (SG[1], SG[2])]
        put(4, st, 2)
        g0 = 40 * P_POS
        put(g0, ["v_dot2c_f32_bf16 %s, %s, %s" % (cs[nb], s_ones, wf[0][nb * 4 + i]) for i in range(4) for nb in range(5)], 2)
        put(g0 + 12, ["v_mov_b32 %s, %s" % (T4, cs[4]), "v_permlane32_swap_b32 %s, %s" % (cs[0], cs[1]), "v_permlane32_swap_b32 %s, %s" % (cs[2], cs[3]),
                      "v_permlane32_swap_b32 %s, %s" % (cs[4], T4),
                      "v_add_f32 %s, %s, %s" % (CQ[0], cs[0], cs[1]), "v_add_f32 %s, %s, %s" % (CQ[1], cs[2], cs[3]), "v_add_f32 %s, %s, %s" % (CQ[2], cs[4], T4),
                      ["s_add_u32 %s, %s, %d" % (s_t3, s_w1024, SCR), "v_add_u32 %s, %s, %s" % (T4, s_t3, vl16)],
                      "v_add_u32 %s, %d, %s" % (T5, SCR, vl16),
                      "ds_write_b128 %s, %s" % (T4, CQ)], 2)
        g0 = 40 * max(1, P_POS) + 32
        LL = [PL[0:4], PL[4:8], PL[8:12], CQ]
        g1 = put(g0, [["@wait nonce", "v_readfirstlane_b32 %s, %s" % (s_nonce, vn)],
                 ["s_cmp_eq_u32 %s, 0" % s_nonce, "s_cbranch_scc1 %s_rn%s" % (label, tg), "%s_rnr%s:" % (label, tg)],
                 ["v_lshrrev_b32 %s, 5, %s" % (T4, lane), "v_lshlrev_b32 %s, 4, %s" % (T4, T4)],
                 ["v_mov_b32 %s, %s" % (SG[3], s_nonce)],
                 ["s_lshr_b32 %s, %s, 6" % (s_t3, s_wo), "s_add_u32 %s, %s, %d" % (s_t3, s_t3, WS_ST), "s_mov_b32 exec_lo, 1", "s_mov_b32 exec_hi, 1", "buffer_store_dwordx4 %s, %s, %s, %s offen %s" % (SG, T4, sW, s_t3, SC), "s_mov_b64 exec, -1"]] , 1)
        put(g0 + 6, ["ds_read_b128 %s, %s offset:%d" % (LL[k], T5, k * 1024) for k in range(4)], 2)
        ool("%s_rn%s:", label, tg)
        ool("s_mov_b32 %s, %d", s_cnt, SPIN)
        ool("%s_rn%s_l:", label, tg)
        ool("buffer_load_dword %s, off, %s, 0 sc1\ns_waitcnt vmcnt(0)\nv_readfirstlane_b32 %s, %s", vn, sDbg, s_nonce, vn)
        ool("s_cmp_lg_u32 %s, 0\ns_cbranch_scc1 %s_rnr%s", s_nonce, label, tg)
        ool("s_sleep 2\ns_sub_u32 %s, %s, 1\ns_cmp_lg_u32 %s, 0\ns_cbranch_scc1 %s_rn%s_l\ns_branch %s_rnr%s", s_cnt, s_cnt, s_cnt, label, tg, label, tg)
        ad = []
        for e in range(3): ad += ["v_add_f32 %s, %s, %s" % (LL[0][e], LL[0][e], LL[1][e]), "v_add_f32 %s, %s, %s" % (CQ[e], CQ[e], LL[2][e])]
        for e in range(3): ad += ["v_add_f32 %s, %s, %s" % (CQ[e], CQ[e], LL[0][e])]
        ad += [["v_mov_b32 %s, %s" % (CQ[3], s_nonce), "s_lshl_b32 %s, %s, 3" % (s_t3, s_ct), "s_add_u32 %s, %s, %s" % (s_t3, s_t3, s_rt),
                "s_lshl_b32 %s, %s, 10" % (s_t3, s_t3), "s_add_u32 %s, %s, %d" % (s_t3, s_t3, WS_CS),
                "s_lshl_b32 %s, %s, 4" % (s_cnt, s_w), "s_lshl_b64 exec, 0xffff, %s" % s_cnt,
                "buffer_store_dwordx4 %s, %s, %s, %s offen %s" % (CQ, vl16, sW, s_t3, SC), "s_mov_b64 exec, -1",
                "s_lshl_b32 %s, %s, 17" % (s_wo, s_w)]]
        put(g0 + 8, ad, 2)
        def gloads():
            return [["v_and_b32 %s, 31, %s" % (T4, lane), "v_lshlrev_b32 %s, 4, %s" % (T4, T4),
                     "s_lshr_b32 %s, %s, 6" % (s_t3, s_i[0]), "s_add_u32 %s, %s, %d" % (s_t3, s_t3, WS_ST),
                     "buffer_load_dwordx4 %s, %s, %s, %s offen %s ; @vm g" % (SL[0], T4, sW, s_t3, SC)],
                    ["buffer_load_dwordx4 %s, %s, %s, %s offen offset:512 %s ; @vm g" % (SL[1], T4, sW, s_t3, SC)],
                    ["s_lshl_b32 %s, %s, 13" % (s_t3, s_ct), "s_add_u32 %s, %s, %s" % (s_t3, s_t3, s_w2048), "s_add_u32 %s, %s, %d" % (s_t3, s_t3, WS_CS),
                     "buffer_load_dwordx4 %s, %s, %s, %s offen %s ; @vm g" % (C0, vl16, sW, s_t3, SC),
                     "buffer_load_dwordx4 %s, %s, %s, %s offen offset:1024 %s ; @vm g" % (C1, vl16, sW, s_t3, SC)]]
        gl = gloads(); gl = [gl[0] + gl[1], gl[2]]
        def gcheck():
            return ["v_xor_b32 %s, %s, %s" % (SL[0][3], s_nonce, SL[0][3]), "v_xor_b32 %s, %s, %s" % (SL[1][3], s_nonce, SL[1][3]),
                    "v_xor_b32 %s, %s, %s" % (C0[3], s_nonce, C0[3]), "v_xor_b32 %s, %s, %s" % (C1[3], s_nonce, C1[3]),
                    "v_or3_b32 %s, %s, %s, %s" % (C0[3], C0[3], C1[3], SL[0][3]), "v_or_b32 %s, %s, %s" % (C0[3], C0[3], SL[1][3]),
                    "v_cmp_ne_u32 %s, 0, %s" % (s_m, C0[3])]
        GC = opt.get("gchk", 260)
        c1 = [["@wait g"] + gcheck()[:2]] + gcheck()[2:] + [
              ["s_cmp_lg_u64 %s, 0" % s_m, "s_cbranch_scc1 %s_rg%s" % (label, tg), "%s_rgr%s:" % (label, tg)]]
        c1 += ["v_add_f32 %s, %s, %s" % (C0[e], C0[e], C1[e]) for e in range(3)]
        c1 += [["s_add_u32 %s, %s, %d" % (s_t3, s_w1024, SCR), "v_add_u32 %s, %s, %s" % (T4, s_t3, vl16)], "ds_write_b128 %s, %s" % (T4, C0)]
        ge = put(GC, c1, 2); assert ge <= 270
        ool("%s_rg%s:", label, tg)
        ool("s_mov_b32 %s, %d", s_cnt, SPIN)
        ool("%s_rg%s_l:", label, tg)
        ool("s_sleep 2")
        for g in gloads(): ool.ext([re.sub(r" ; @vm.*", "", x) for x in g])
        ool("s_waitcnt vmcnt(0)"); ool.ext(gcheck())
        ool("s_cmp_eq_u64 %s, 0\ns_cbranch_scc1 %s_rgr%s", s_m, label, tg)
        ool("s_sub_u32 %s, %s, 1\ns_cmp_lg_u32 %s, 0\ns_cbranch_scc1 %s_rg%s_l\ns_branch %s_rgr%s", s_cnt, s_cnt, s_cnt, label, tg, label, tg)
        L2 = [C0, C1, AB[0:4], VO4]
        put(272, ["ds_read_b128 %s, %s offset:%d" % (L2[k], T5, k * 1024) for k in range(4)], 1)
        b = ["s_mov_b32 %s, 0" % s_m[0], "s_mov_b32 %s, -1" % s_m[1]]
        for tb in range(2):
            B = AB[6 + 6 * tb:12 + 6 * tb]; mean = SL[tb][0]
            b += ["v_cvt_pk_bf16_f32 %s, %s, 0" % (B[1], mean), "v_lshlrev_b32 %s, 16, %s" % (T4, B[1]), "v_sub_f32 %s, %s, %s" % (T4, mean, T4),
                  "v_cvt_pk_bf16_f32 %s, %s, %s" % (B[0], mean, T4),
                  "v_cndmask_b32 %s, 0, %s, %s" % (B[4], B[0], s_m), "v_cndmask_b32 %s, 0, %s, %s" % (B[5], B[1], s_m),
                  "v_cndmask_b32 %s, %s, 0, %s" % (B[0], B[0], s_m), "v_cndmask_b32 %s, %s, 0, %s" % (B[1], B[1], s_m),
                  "v_mov_b32 %s, 0" % B[2], "v_mov_b32 %s, 0" % B[3]]
        if typeB:
            b += [["s_lshl_b32 %s, %s, 8" % (s_t3, s_w), "v_and_b32 %s, 31, %s" % (T4, lane), "v_lshl_add_u32 %s, %s, 2, %s" % (T4, T4, s_t3)]]
            b += ["ds_write_b32 %s, %s offset:%d" % (T4, SL[tb][1], 2 * WST + tb * 128) for tb in range(2)]
        ge = put(276, b, 2)
        ad = []
        for e in range(3): ad += ["v_add_f32 %s, %s, %s" % (C0[e], C0[e], C1[e]), "v_add_f32 %s, %s, %s" % (VO4[e], VO4[e], AB[e])]
        for e in range(3): ad += ["v_add_f32 %s, %s, %s" % (C0[e], C0[e], VO4[e])]
        for e, pos in ((2, 0), (0, 2), (1, 4)):
            ad += ["v_cvt_pk_bf16_f32 %s, %s, %s" % (AB[pos], C0[e], C0[e]), "v_lshlrev_b32 %s, 16, %s" % (T4, AB[pos]),
                   "v_sub_f32 %s, %s, %s" % (T4, C0[e], T4), "v_cvt_pk_bf16_f32 %s, %s, 0" % (AB[pos + 1], T4)]
        ge = put(max(ge, 280), ad, 2); assert ge <= 316, ge
        wd = [wdload(k) for k in range(56)]; wo = [woload(k) for k in range(16)]
        nx = opt.get("wdn", [0, 4, 6, 6, 6, 6, 12, 16])
        assert sum(nx) == 56
        for k in range(-1, 7):
            lo = 0 if k < 0 else 40 * k + 32
            hi = 40 * (k + 1) + 31 if k < 6 else 318
            dm = dma(k + 3) if k + 3 < 8 else []
            ex = [wd.pop(0) for _ in range(nx[k + 1])]
            if k == 5: ex = gl + merge(ex, wo[:8])
            if k == 6: ex = merge(ex, wo[8:])
            if k == -1: ex = [["buffer_load_dword %s, off, %s, 0 sc1 ; @vm nonce" % (vn, sDbg)]] + ex
            if k == 0:
                SN = PL[24:28]
                ex = ex + [["v_mov_b32 %s, -1" % SN[e] for e in range(4)] +
                           ["s_lshr_b32 %s, %s, 15" % (s_t3, s_i[0]), "s_mul_i32 %s, %s, 144" % (s_t3, s_t3), "s_add_u32 %s, %s, %s" % (s_t3, s_t3, s_ct),
                            "s_lshl_b32 %s, %s, 10" % (s_t3, s_t3), "s_add_u32 %s, %s, %d" % (s_t3, s_t3, WS_AF),
                            "buffer_store_dwordx4 %s, %s, %s, %s offen %s" % (SN, vl16, sW, s_t3, SC),
                            "s_add_u32 %s, %s, %d" % (s_t3, s_t3, 144 * 1024),
                            "buffer_store_dwordx4 %s, %s, %s, %s offen %s" % (SN, vl16, sW, s_t3, SC)]]
            items = merge(dm, ex) if dm and ex else dm + ex
            n = len(items)
            for q, it in enumerate(items):
                fill[lo + (q * (hi - lo)) // n].insert(0, it)
        for c in range(8):
            if c in (2, 4, 6): stamp(2 + c // 2)
            for sg in range(4):
                a("s_waitcnt lgkmcnt(0)")
                m = mfmas(sg & 1, typeB, c == 0 and sg == 0)
                rd = reads(c, sg + 1) if sg < 3 else (reads(c + 1, 0) if c < 7 else [])
                k = 0
                for i, x in enumerate(m):
                    a(x)
                    if sg == 3 and c < 7 and i == 1: a("@wait d%d\ns_barrier", c + 1)
                    if sg < 3 or i >= 1:
                        for _ in range(2):
                            if k < len(rd): a(rd[k]); k += 1
                    for gr in fill[c * 40 + sg * 10 + i]: a.ext(gr)
                assert k == len(rd)
        stamp(6)
        Aw = {0: AB[2:6], 1: AB[0:4], 2: AB[4:8], 3: AB[2:6], 4: AB[0:4]}
        useX = {0: 1, 1: 0, 2: 1, 3: 0, 4: 1}
        def corr(nb, tb):
            B = AB[6 + 6 * tb:12 + 6 * tb]; B = B[0:4] if useX[nb] else B[2:6]
            A = Aw[nb]
            if typeB and nb < 4: A, B = B, A
            return "v_mfma_f32_32x32x16_bf16 %s, %s, %s, %s" % (ACC(nb, tb), A, B, ACC(nb, tb))
        rstd = [SL[0][1], SL[1][1]]
        e0, e1, e2 = [xf[0][i] for i in range(3)]
        sc2 = [R("v", xf[0].b + 4, 2), R("v", xf[0].b + 6, 2)]
        order = [(4, 0), (4, 1), (0, 0), (2, 0), (0, 1), (2, 1), (1, 0), (3, 0), (1, 1), (3, 1)] if not typeB else \
                [(4, 0), (4, 1)] + [(nb, tb) for tb in range(2) for nb in range(4)]
        M = [corr(*o) for o in order]
        f = []
        f += [["s_lshl_b32 %s, %s, 3" % (s_t, s_rt), "s_lshl_b32 %s, %s, 1" % (s_t2, s_w), "s_add_u32 %s, %s, %s" % (s_i[0], s_t, s_t2),
               "s_lshr_b32 %s, %s, 4" % (s_t, s_ct), "s_lshl_b32 %s, %s, 21" % (s_t, s_t),
               "s_lshl_b32 %s, %s, 15" % (s_t2, s_i[0]), "s_add_u32 %s, %s, %s" % (s_t, s_t, s_t2),
               "s_and_b32 %s, %s, 15" % (s_t2, s_ct), "s_lshl_b32 %s, %s, 11" % (s_t2, s_t2), "s_add_u32 %s, %s, %s" % (s_i[1], s_t, s_t2),
               "s_add_u32 %s, %s, %d" % (s_i[2], s_i[1], 32768),
               "s_cmp_lt_u32 %s, 16" % s_ct, "s_cselect_b32 %s, %s, 1.0" % (s_t, fx(QSCALE))]]
        f += [["v_mul_f32 %s, %s, %s" % (sc2[tb][0], s_t, rstd[tb]), "v_mul_f32 %s, %s, %s" % (sc2[tb][1], s_t, rstd[tb])] for tb in range(2)]
        if not typeB:
            f += [["s_mul_i32 %s, %s, %d" % (s_i[3], s_i[0], 144 * 1024), "s_lshl_b32 %s, %s, 12" % (s_t2, s_ct), "s_add_u32 %s, %s, %s" % (s_i[3], s_i[3], s_t2),
                   "s_add_u32 %s, %s, %d" % (s_i[3], s_i[3], WS_AF + 32 * 1024), "s_add_u32 %s, %s, %d" % (s_i[4], s_i[3], 144 * 1024)]]
        else:
            RS = [wf[0][0:16], aG[0][0]]
            RS = [wf[0][0:16], R("v", aG[0][0].b, 16)]
            assert RS[1].b % 2 == 0
            f += [["v_bfe_u32 %s, %s, 4, 1" % (e1, lane), "v_lshlrev_b32 %s, 10, %s" % (e1, e1),
                   "v_lshrrev_b32 %s, 5, %s" % (e2, lane), "v_lshl_add_u32 %s, %s, 8, %s" % (e1, e2, e1),
                   "v_and_b32 %s, 15, %s" % (e0, lane), "v_lshl_add_u32 %s, %s, 4, %s" % (e1, e0, e1),
                   "s_lshl_b32 %s, %s, 8" % (s_t2, s_w), "v_lshl_add_u32 %s, %s, 4, %s" % (e2, e2, s_t2)] +
                  ["ds_read_b128 %s, %s offset:%d" % (RS[tb][g * 4:g * 4 + 4], e2, 2 * WST + tb * 128 + g * 32) for tb in range(2) for g in range(4)] +
                  ["s_lshl_b32 %s, %s, 15" % (s_i[3], s_i[0]), "s_sub_u32 %s, %s, 28" % (s_t2, s_ct), "s_lshl_b32 %s, %s, 13" % (s_t2, s_t2),
                   "s_add_u32 %s, %s, %s" % (s_i[3], s_i[3], s_t2), "s_add_u32 %s, %s, %d" % (s_i[3], s_i[3], WS_V),
                   "s_add_u32 %s, %s, %d" % (s_i[4], s_i[3], 32768), "s_add_u32 %s, %s, %d" % (s_i[5], s_i[3], 4096), "s_add_u32 %s, %s, %d" % (s_i[6], s_i[4], 4096)]]
        for i in range(4):
            a(M[i]); a.ext(f[i])
        def qk(tb):
            G = ACC(4, tb); g = []
            for i in range(0, 16, 2): g.append("v_pk_mul_f32 %s, %s, %s" % (G[i:i + 2], G[i:i + 2], sc2[tb]))
            for i in range(0, 16, 2): g.append("v_cvt_pk_bf16_f32 %s, %s, %s" % (G[i // 2], G[i], G[i + 1]))
            for hf in range(2): g.append("buffer_store_dwordx4 %s, %s, %s, %s offen offset:%d %s" % (G[hf * 4:hf * 4 + 4], vl16, sW, s_i[1 + tb], hf * 1024, SC))
            return g
        a.ext(interleave(M[4:], qk(0) + qk(1)))
        if not typeB:
            for nb in range(2):
                for tb in range(2):
                    G, U = ACC(nb, tb), ACC(nb + 2, tb)
                    for i in range(0, 16, 2): a("v_pk_mul_f32 %s, %s, %s", G[i:i + 2], G[i:i + 2], U[i:i + 2])
                    for i in range(0, 16, 2): a("v_cvt_pk_bf16_f32 %s, %s, %s", G[i // 2], G[i], G[i + 1])
                    for hf in range(2):
                        a("buffer_store_dwordx4 %s, %s, %s, %s offen offset:%d %s", G[hf * 4:hf * 4 + 4], vl16, sW, s_i[3 + tb], (2 * nb + hf) * 1024, SC)
            a("@save p2\ns_branch %s_p2", label)
        else:
            a("s_waitcnt lgkmcnt(0)")
            for tb in range(2):
                for nb in range(4):
                    G = ACC(nb, tb)
                    for i in range(0, 16, 2): a("v_pk_mul_f32 %s, %s, %s", G[i:i + 2], G[i:i + 2], RS[tb][i:i + 2])
                    for i in range(0, 16, 2): a("v_cvt_pk_bf16_f32 %s, %s, %s", G[i // 2], G[i], G[i + 1])
                    for hf in range(2):
                        a("buffer_store_dwordx4 %s, %s, %s, %s offen offset:%d %s", G[hf * 4:hf * 4 + 4], e1, sW, s_i[3 + tb + 2 * (nb >> 1)], (nb & 1) * 2048 + hf * 512, SC)
    import importlib
    importlib.import_module(opt.get("p2", "fz2")).phase2(a, ool, label, opt, locals())
    a("%s_end:\ns_endpgm", label)
    lines = []
    for l in a.L: lines += l.split("\n")
    lines = [l.replace(" ; @vm skip", " ; @novm") for l in lines if l != "@dropskip"]
    a0.L += resolve2(lines) + ool.L
    return dict(vgpr=512, accum=256, lds=163840)

def resolve2(lines):
    tmp = []
    for l in lines:
        tmp.append(l)
    out = []
    hidden = {}
    for k, l in enumerate(tmp):
        if "@novm" in l:
            hidden["@@%d" % k] = l.replace(" ; @novm", ""); out.append("@@%d" % k)
        else: out.append(l)
    res = resolve(out)
    return [hidden.get(l, l) for l in res]
```

```python
from asmlib import *

WS_QK = 0
WS_V  = 4 << 20
WS_AF = 8 << 20
WS_SIZE = 18 << 20
QSCALE = 0.25 * 1.4426950408889634

import struct
def f2u(f): return struct.unpack("<I", struct.pack("<f", f))[0]

WST = 20480
XB0 = 61440
XW = 24576

def gen_k1(a, label, opt):
    sc = opt.get("st_flags", "")
    mapping = opt.get("map1", "4x8")
    V = Alloc("v", 1, 96)
    acc = R("v", 96, 160)
    def ACC(nb, tb): return acc[(nb * 2 + tb) * 16:(nb * 2 + tb) * 16 + 16]
    wf = [V(20, 4), R("a", 0, 20)]
    xf = [V(8, 4), V(8, 4)]
    aG = [[V(), V()] for _ in range(4)]
    aQ = [V() for _ in range(4)]
    aX = [V() for _ in range(4)]
    voX = [V(), V()]; voG = V(); voQ = V()
    ssum = [[V(), V()], [V(), V()]]; ssq = [[V(), V()], [V(), V()]]
    cs = [V() for _ in range(5)]
    lane = V(); t0 = V(); t1 = V(); t2 = V(); t3 = V(); t4 = V(); t5 = V()
    sX, sG, sU, sQ, sW = R("s", 4, 4), R("s", 8, 4), R("s", 12, 4), R("s", 16, 4), R("s", 20, 4)
    s_w, s_rt, s_ct, s_stride, s_col, s_w2048, s_w1024, s_xb, s_t, s_t2, s_ones = [R("s", 32 + i) for i in range(11)]
    s_i = [R("s", 48 + i) for i in range(8)]
    stamps = []
    def stamp():
        if opt.get("stamp") is None: return
        i = len(stamps); stamps.append(i)
        a("s_memtime s[%d:%d]" % (60 + 2 * i, 61 + 2 * i))
    def dump_stamps(tag):
        if opt.get("stamp") is None: return
        a("s_waitcnt vmcnt(0)")
        stamp()
        a("s_memrealtime s[96:97]")
        a("s_load_dwordx2 s[4:5], s[0:1], 64\ns_mov_b32 s6, 256\ns_mov_b32 s7, 0x00020000")
        a("s_waitcnt lgkmcnt(0)")
        a("s_cmp_lg_u32 %s, 0\ns_cbranch_scc1 %s_sk%s", s_w, label, tag)
        a("s_mov_b32 %s, 0", s_t2)
        for k, wg in enumerate(opt["stamp"]):
            a("s_cmp_eq_u32 s2, %d\ns_cselect_b32 %s, %d, %s", wg, s_t2, 1 + k * 64, s_t2)
        a("s_cmp_eq_u32 %s, 0\ns_cbranch_scc1 %s_sk%s", s_t2, label, tag)
        a("s_sub_u32 %s, %s, 1", s_t2, s_t2)
        a("v_mov_b32 v1, 0")
        for i in range(1, len(stamps)):
            a("s_sub_u32 %s, s%d, s60\nv_mov_b32 v2, %s", s_t, 60 + 2 * i, s_t)
            a("buffer_store_dword v2, v1, s[4:7], %s offen offset:%d", s_t2, 4 * (i - 1))
        a("v_mov_b32 v2, s94\nbuffer_store_dword v2, v1, s[4:7], %s offen offset:56", s_t2)
        a("v_mov_b32 v2, s96\nbuffer_store_dword v2, v1, s[4:7], %s offen offset:60", s_t2)
        a("%s_sk%s:", label, tag)
    tl = Timeline(a, opt.get("tl"), 0, 60)
    if opt.get("tl"):
        def stamp():
            tl.n = len(stamps); stamps.append(0); tl.stamp()
        def dump_stamps(tag):
            tl.n = len(stamps); tl.dump(s_w)
    a("%s:", label)
    stamp()
    if opt.get("stamp") is not None: a("s_memrealtime s[94:95]")
    a("s_cmp_ge_u32 s2, 256\ns_cbranch_scc1 %s_end", label)
    a("s_load_dwordx4 s[24:27], s[0:1], 0")
    a("s_load_dwordx4 s[28:31], s[0:1], 32")
    a("s_load_dwordx2 s[20:21], s[0:1], 72")
    a("v_and_b32 %s, 63, v0", lane)
    a("v_lshrrev_b32 %s, 6, v0", t0)
    a("s_and_b32 %s, s2, 7\ns_lshr_b32 %s, s2, 3", s_t, s_t2)
    a("v_readfirstlane_b32 %s, %s", s_w, t0)
    if mapping == "4x8":
        a("s_and_b32 %s, %s, 1\ns_lshl_b32 %s, %s, 2", s_rt, s_t, s_rt, s_rt)
        a("s_and_b32 %s, %s, 3\ns_add_u32 %s, %s, %s", s_ct, s_t2, s_rt, s_rt, s_ct)
        a("s_lshr_b32 %s, %s, 1\ns_lshl_b32 %s, %s, 3", s_ct, s_t, s_ct, s_ct)
        a("s_lshr_b32 %s, %s, 2\ns_add_u32 %s, %s, %s", s_t2, s_t2, s_ct, s_ct, s_t2)
    elif mapping == "2x16":
        a("s_and_b32 %s, %s, 3\ns_lshl_b32 %s, %s, 1", s_rt, s_t, s_rt, s_rt)
        a("s_and_b32 %s, %s, 1\ns_add_u32 %s, %s, %s", s_ct, s_t2, s_rt, s_rt, s_ct)
        a("s_lshr_b32 %s, %s, 2\ns_lshl_b32 %s, %s, 4", s_ct, s_t, s_ct, s_ct)
        a("s_lshr_b32 %s, %s, 1\ns_add_u32 %s, %s, %s", s_t2, s_t2, s_ct, s_ct, s_t2)
    else:
        a("s_mov_b32 %s, %s\ns_mov_b32 %s, %s", s_rt, s_t, s_ct, s_t2)
    a("s_lshl_b32 %s, %s, 11\ns_lshl_b32 %s, %s, 10", s_w2048, s_w, s_w1024, s_w)
    a("s_mul_i32 %s, %s, %d\ns_add_u32 %s, %s, %d", s_xb, s_w, XW, s_xb, s_xb, XB0)
    a("s_mov_b32 %s, 0x3f803f80", s_ones)
    a("s_lshl_b32 %s, %s, 7", s_col, s_ct)
    a("s_lshl_b32 %s, %s, 8\ns_sub_u32 %s, %s, %d", s_t, s_ct, s_t, s_t, 28 * 256 - 2048)
    a("s_cmp_ge_u32 %s, 28", s_ct)
    a("s_cselect_b32 %s, %s, %s", s_col, s_t, s_col)
    a("s_movk_i32 %s, 3584\ns_cselect_b32 %s, 3072, %s", s_stride, s_stride, s_stride)
    a("s_lshl_b32 %s, %s, 18\ns_lshl_b32 %s, %s, 16\ns_add_u32 %s, %s, %s", s_t, s_rt, s_t2, s_w, s_i[0], s_t, s_t2)
    for i in range(1, 8): a("s_add_u32 %s, %s, %d", s_i[i], s_i[0], i * 8192)
    a("v_lshrrev_b32 %s, 3, %s", t0, lane)
    a("v_and_b32 %s, 7, %s", t1, lane)
    a("v_lshrrev_b32 %s, 4, %s", t2, lane)
    a("v_xor_b32 %s, %s, %s", t3, t1, t2)
    a("v_lshlrev_b32 %s, 4, %s", t3, t3)
    a("v_lshl_add_u32 %s, %s, 10, %s", voX[0], t0, t3)
    a("v_xor_b32 %s, 64, %s", voX[1], voX[0])
    a("v_and_b32 %s, 1, %s\nv_lshlrev_b32 %s, 2, %s", t3, t2, t3, t3)
    a("v_xor_b32 %s, %s, %s\nv_lshlrev_b32 %s, 4, %s", t3, t1, t3, t3, t3)
    a("s_lshl_b32 %s, %s, 4", s_t, s_w)
    a("v_add_u32 %s, %s, %s", t4, s_t, t0)
    a("v_mul_lo_u32 %s, %s, %s", t4, t4, s_stride)
    a("v_add3_u32 %s, %s, %s, %s", voG, t4, t3, s_col)
    a("v_lshrrev_b32 %s, 2, %s\nv_add_u32 %s, %s, %s", t4, lane, t4, s_t, t4)
    a("v_mul_u32_u24 %s, 3072, %s", t4, t4)
    a("v_and_b32 %s, 3, %s\nv_lshlrev_b32 %s, 4, %s", t3, lane, t3, t3)
    a("s_lshl_b32 %s, %s, 6", s_t, s_ct)
    a("v_add3_u32 %s, %s, %s, %s", voQ, t4, t3, s_t)
    a("s_waitcnt lgkmcnt(0)")
    a("s_mov_b32 s4, s24\ns_mov_b32 s5, s25\ns_mov_b32 s6, 0x200000\ns_mov_b32 s7, 0x00020000")
    a("s_mov_b32 s16, s26\ns_mov_b32 s17, s27\ns_mov_b32 s18, %d\ns_mov_b32 s19, 0x00020000", 512 * 3072)
    a("s_add_u32 %s, s26, 128\ns_addc_u32 %s, s27, 0", s_t, s_t2)
    a("s_cmp_ge_u32 %s, 28", s_ct)
    a("s_cselect_b32 s8, s26, s28\ns_cselect_b32 s9, s27, s29")
    a("s_cselect_b32 s12, %s, s30\ns_cselect_b32 s13, %s, s31", s_t, s_t2)
    a("s_mov_b32 s14, %d", 512 * 3584)
    a("s_cselect_b32 s10, %d, s14\ns_mov_b32 s11, 0x00020000", 512 * 3072)
    a("s_cselect_b32 s14, %d, s14\ns_mov_b32 s15, 0x00020000", 512 * 3072 - 128)
    a("s_mov_b32 s22, %d\ns_mov_b32 s23, 0x00020000", WS_SIZE)

    def dma(c):
        st = c % 3
        g = []
        for j in range(2):
            g.append(["s_mul_i32 %s, %s, %d" % (s_t, s_stride, 64 * c + 8 * j),
                      "s_add_u32 m0, %s, %d" % (s_w2048, st * WST + j * 1024), "s_nop 0",
                      "buffer_load_dwordx4 %s, %s, %s offen lds" % (voG, sG, s_t)])
            g.append(["s_add_u32 m0, %s, %d" % (s_w2048, st * WST + 8192 + j * 1024), "s_nop 0",
                      "buffer_load_dwordx4 %s, %s, %s offen lds" % (voG, sU, s_t)])
        g.append(["s_add_u32 m0, %s, %d" % (s_w1024, st * WST + 16384),
                  "s_mov_b32 %s, %d" % (s_t, 64 * c * 3072),
                  "buffer_load_dwordx4 %s, %s, %s offen lds" % (voQ, sQ, s_t)])
        for i in range(8):
            g.append(["s_add_u32 m0, %s, %d" % (s_xb, st * 8192 + i * 1024 - c * 128), "s_nop 0",
                      "buffer_load_dwordx4 %s, %s, %s offen offset:%d lds" % (voX[i & 1], sX, s_i[i], c * 128)])
        return g
    for c in range(3):
        for g in dma(c): a.ext(g)
    a("v_lshrrev_b32 %s, 5, %s", t0, lane)
    a("v_bfe_u32 %s, %s, 2, 2", t1, lane)
    a("v_bfe_u32 %s, %s, 4, 1", t2, lane)
    a("v_and_b32 %s, 3, %s", t3, lane)
    a("v_lshlrev_b32 %s, 3, %s\nv_lshl_add_u32 %s, %s, 5, %s", t3, t3, t3, t2, t3)
    a("v_lshlrev_b32 %s, 10, %s\nv_lshl_add_u32 %s, %s, 7, %s\nv_add_u32 %s, %s, %s", t4, t0, t4, t1, t4, t4, t4, t3)
    a("v_lshrrev_b32 %s, 1, %s\nv_lshl_add_u32 %s, %s, 6, %s", t5, t1, t4, t5, t4)
    a("v_lshlrev_b32 %s, 9, %s\nv_lshl_add_u32 %s, %s, 6, %s\nv_add_u32 %s, %s, %s", t5, t0, t5, t1, t5, t5, t5, t3)
    for sg in range(4):
        a("s_add_u32 %s, %s, %d\ns_and_b32 %s, %s, 3", s_t, s_w, sg, s_t, s_t)
        a("s_lshl_b32 %s, %s, 11", s_t2, s_t)
        a("v_add_u32 %s, %s, %s", aG[sg][0], s_t2, t4)
        a("v_xor_b32 %s, 64, %s", aG[sg][1], aG[sg][0])
        a("s_lshl_b32 %s, %s, 10", s_t2, s_t)
        a("v_add_u32 %s, %s, %s", aQ[sg], s_t2, t5)
    a("v_and_b32 %s, 31, %s", t1, lane)
    a("v_bfe_u32 %s, %s, 1, 3", t2, lane)
    a("v_lshlrev_b32 %s, 7, %s\nv_add_u32 %s, %s, %s", t1, t1, t1, s_xb, t1)
    for sg in range(4):
        a("s_add_u32 %s, %s, %d\ns_and_b32 %s, %s, 3\ns_lshl_b32 %s, %s, 1", s_t, s_w, sg, s_t, s_t, s_t, s_t)
        a("v_add_u32 %s, %s, %s\nv_xor_b32 %s, %s, %s", t3, s_t, t0, t3, t3, t2)
        a("v_lshl_add_u32 %s, %s, 4, %s", aX[sg], t3, t1)
    for r in ssum[0] + ssum[1] + ssq[0] + ssq[1] + cs: a("v_mov_b32 %s, 0", r)

    def reads(c, sg):
        st = c % 3; p = sg & 1
        g = []
        for tb in range(2):
            g.append("ds_read_b128 %s, %s offset:%d" % (xf[p][tb * 4:tb * 4 + 4], aX[sg], st * 8192 + tb * 4096))
        for nb in range(5):
            for j in range(2):
                if nb < 4: ad, off = aG[sg][nb & 1], st * WST + (nb >> 1) * 8192 + j * 512
                else: ad, off = aQ[sg], st * WST + 16384 + j * 256
                g.append("ds_read_b64_tr_b16 %s, %s offset:%d" % (wf[p][nb * 4 + 2 * j:nb * 4 + 2 * j + 2], ad, off))
        return g
    def dots(sg):
        p = sg & 1
        g = []
        for i in range(4):
            for tb in range(2):
                g.append("v_dot2c_f32_bf16 %s, %s, %s" % (ssum[tb][i & 1], s_ones, xf[p][tb * 4 + i]))
                g.append("v_dot2c_f32_bf16 %s, %s, %s" % (ssq[tb][i & 1], xf[p][tb * 4 + i], xf[p][tb * 4 + i]))
        if sg == 0:
            c2 = []
            for i in range(4):
                for nb in range(5):
                    c2.append("v_dot2c_f32_bf16 %s, %s, %s" % (cs[nb], s_ones, wf[p][nb * 4 + i]))
            g = merge(g, c2)
        return g
    def mfmas(p, typeB, first, W=None, X=None):
        g = []
        W = W or wf[p]; X = X or xf[p]
        for nb in range(5):
            for tb in range(2):
                A, B = W[nb * 4:nb * 4 + 4], X[tb * 4:tb * 4 + 4]
                if typeB and nb < 4: A, B = B, A
                g.append("v_mfma_f32_32x32x16_bf16 %s, %s, %s, %s" % (ACC(nb, tb), A, B, "0" if first else str(ACC(nb, tb))))
        return g

    stamp()
    a("s_waitcnt vmcnt(26)\ns_barrier")
    stamp()
    a.ext(reads(0, 0))
    a("s_cmp_ge_u32 %s, 28\ns_cbranch_scc1 %s_B", s_ct, label)
    for typeB in (False, True):
        if typeB: a("%s_B:", label)
        del stamps[3:]
        for c in range(8):
            if c: stamp()
            for sg in range(4):
                a("s_waitcnt lgkmcnt(0)")
                m = mfmas(sg & 1, typeB, c == 0 and sg == 0)
                d = dots(sg) if not opt.get("nodot") else []
                if sg < 3:
                    rd = reads(c, sg + 1)
                    body = interleave(m, rd, per=2)
                    body = []
                    k = 0; kd_ = 0
                    for i, x in enumerate(m):
                        body.append(x)
                        for _ in range(2):
                            if k < len(rd): body.append(rd[k]); k += 1
                        tgt = (len(d) * (i + 1) + 9) // 10
                        while kd_ < tgt: body.append(d[kd_]); kd_ += 1
                    a.ext(body)
                else:
                    if c < 7:
                        rd = reads(c + 1, 0)
                        dm = dma(c + 3) if c + 3 < 8 else []
                        body = []
                        k = 0; kd_ = 0; km = 0
                        for i, x in enumerate(m):
                            body.append(x)
                            if i == 1:
                                body.append("s_waitcnt vmcnt(%d)" % (13 if c + 2 < 8 else 0))
                                body.append("s_barrier")
                            if i >= 1:
                                for _ in range(3):
                                    if k < len(rd): body.append(rd[k]); k += 1
                            tgt = (len(d) * (i + 1) + 9) // 10
                            while kd_ < tgt: body.append(d[kd_]); kd_ += 1
                            if i >= 3:
                                for _ in range(2):
                                    if km < len(dm): body.extend(dm[km]); km += 1
                        assert km == len(dm) and k == len(rd)
                        a.ext(body)
                    else:
                        a.ext(interleave(m, d))
        stamp()
        a("v_lshlrev_b32 %s, 2, %s", t0, lane)
        a("s_mul_i32 %s, %s, 1280", s_t, s_w)
        a("v_add_u32 %s, %s, %s", t1, s_t, t0)
        for nb in range(5): a("ds_write_b32 %s, %s offset:%d", t1, cs[nb], nb * 256)
        mean = [ssum[0][0], ssum[1][0]]; rstd = [ssq[0][0], ssq[1][0]]
        for tb in range(2):
            for arr in (ssum, ssq):
                x0, x1 = arr[tb]
                a("v_add_f32 %s, %s, %s", x0, x0, x1)
                a("v_mov_b32 %s, %s", x1, x0)
                a("s_nop 1")
                a("v_permlane32_swap_b32 %s, %s", x0, x1)
                a("v_add_f32 %s, %s, %s", x0, x0, x1)
            a("v_mul_f32 %s, %s, %s", mean[tb], "0x%08x" % f2u(-1.0 / 512), mean[tb])
            a("v_mul_f32 %s, %s, %s", t2, mean[tb], mean[tb])
            a("v_mul_f32 %s, %s, %s", rstd[tb], "0x%08x" % f2u(1.0 / 512), rstd[tb])
            a("v_sub_f32 %s, %s, %s", rstd[tb], rstd[tb], t2)
            a("v_max_f32 %s, 0, %s", rstd[tb], rstd[tb])
            a("v_add_f32 %s, %s, %s", rstd[tb], "0x%08x" % f2u(1e-5), rstd[tb])
            a("v_rsq_f32 %s, %s", rstd[tb], rstd[tb])
        a("s_waitcnt lgkmcnt(0)\ns_barrier")
        W0 = wf[0]
        for nb in range(5):
            for w in range(4):
                a("ds_read_b32 %s, %s offset:%d", W0[nb * 4 + w], t0, w * 1280 + nb * 256)
        X0 = xf[0]
        for tb in range(2):
            a("v_cvt_pk_bf16_f32 %s, %s, 0", X0[tb * 4 + 1], mean[tb])
            a("v_lshlrev_b32 %s, 16, %s", t2, X0[tb * 4 + 1])
            a("v_sub_f32 %s, %s, %s", t2, mean[tb], t2)
            a("v_cvt_pk_bf16_f32 %s, %s, %s", X0[tb * 4], mean[tb], t2)
            a("v_mov_b32 %s, 0\nv_mov_b32 %s, 0", X0[tb * 4 + 2], X0[tb * 4 + 3])
        if typeB:
            a("s_lshl_b32 %s, %s, 8", s_t, s_w)
            a("v_and_b32 %s, 31, %s\nv_lshlrev_b32 %s, 2, %s\nv_add_u32 %s, %s, %s", t3, lane, t3, t3, t3, s_t, t3)
            for tb in range(2): a("ds_write_b32 %s, %s offset:%d", t3, rstd[tb], 8192 + tb * 128)
        for nb in range(5):
            a("s_waitcnt lgkmcnt(%d)", min(15, 4 * (4 - nb) + (2 if typeB else 0)))
            r0, r1, r2, r3 = [W0[nb * 4 + i] for i in range(4)]
            a("v_add_f32 %s, %s, %s\nv_add_f32 %s, %s, %s\nv_add_f32 %s, %s, %s", r0, r0, r1, r2, r2, r3, r2, r0, r2)
            a("v_cvt_pk_bf16_f32 %s, %s, %s", r0, r2, r2)
            a("v_lshlrev_b32 %s, 16, %s", r1, r0)
            a("v_sub_f32 %s, %s, %s", r1, r2, r1)
            a("v_cvt_pk_bf16_f32 %s, %s, 0", r1, r1)
            a("v_mov_b32 %s, 0\nv_mov_b32 %s, 0", r2, r3)
        a("s_nop 1")
        a.ext(mfmas(0, typeB, False))
        a("s_lshl_b32 %s, %s, 3\ns_lshl_b32 %s, %s, 1\ns_add_u32 %s, %s, %s", s_t, s_rt, s_t2, s_w, s_i[0], s_t, s_t2)
        a("v_lshlrev_b32 %s, 4, %s", t0, lane)
        a("s_lshr_b32 %s, %s, 4\ns_lshl_b32 %s, %s, 21", s_t, s_ct, s_t, s_t)
        a("s_lshl_b32 %s, %s, 15\ns_add_u32 %s, %s, %s", s_t2, s_i[0], s_t, s_t, s_t2)
        a("s_and_b32 %s, %s, 15\ns_lshl_b32 %s, %s, 11\ns_add_u32 %s, %s, %s", s_t2, s_ct, s_t2, s_t2, s_i[1], s_t, s_t2)
        a("s_add_u32 %s, %s, %d", s_i[2], s_i[1], 32768)
        a("s_cmp_lt_u32 %s, 16\ns_cselect_b32 %s, 0x%08x, 1.0", s_ct, s_t, f2u(QSCALE))
        sc2 = [R("v", xf[1].b, 2), R("v", xf[1].b + 2, 2)]
        if not typeB:
            a("s_mul_i32 %s, %s, %d\ns_lshl_b32 %s, %s, 12\ns_add_u32 %s, %s, %s", s_i[3], s_i[0], 144 * 1024, s_t2, s_ct, s_i[3], s_i[3], s_t2)
            a("s_add_u32 %s, %s, %d", s_i[3], s_i[3], WS_AF + 32 * 1024)
            a("s_add_u32 %s, %s, %d", s_i[4], s_i[3], 144 * 1024)
            for tb in range(2):
                a("v_mul_f32 %s, %s, %s", sc2[tb][0], rstd[tb], rstd[tb])
                a("v_mov_b32 %s, %s", sc2[tb][1], sc2[tb][0])
            a("s_nop 7")
            for nb in range(2):
                for tb in range(2):
                    G, U = ACC(nb, tb), ACC(nb + 2, tb)
                    for i in range(0, 16, 2):
                        a("v_pk_mul_f32 %s, %s, %s", G[i:i + 2], G[i:i + 2], U[i:i + 2])
                    for i in range(0, 16, 2):
                        a("v_pk_mul_f32 %s, %s, %s", G[i:i + 2], G[i:i + 2], sc2[tb])
                    for i in range(0, 16, 2):
                        a("v_cvt_pk_bf16_f32 %s, %s, %s", U[i // 2], G[i], G[i + 1])
                    for hf in range(2):
                        a("buffer_store_dwordx4 %s, %s, %s, %s offen offset:%d %s", U[hf * 4:hf * 4 + 4], t0, sW, s_i[3 + tb], (2 * nb + hf) * 1024, sc)
        else:
            a("v_bfe_u32 %s, %s, 4, 1\nv_lshlrev_b32 %s, 10, %s", t1, lane, t1, t1)
            a("v_lshrrev_b32 %s, 5, %s\nv_lshl_add_u32 %s, %s, 8, %s", t2, lane, t1, t2, t1)
            a("v_and_b32 %s, 15, %s\nv_lshl_add_u32 %s, %s, 4, %s", t2, lane, t1, t2, t1)
            a("s_lshl_b32 %s, %s, 15\ns_sub_u32 %s, %s, 28\ns_lshl_b32 %s, %s, 13\ns_add_u32 %s, %s, %s", s_i[3], s_i[0], s_t2, s_ct, s_t2, s_t2, s_i[3], s_i[3], s_t2)
            a("s_add_u32 %s, %s, %d", s_i[3], s_i[3], WS_V)
            a("s_add_u32 %s, %s, %d", s_i[4], s_i[3], 32768)
            a("s_add_u32 %s, %s, %d", s_i[5], s_i[3], 4096)
            a("s_add_u32 %s, %s, %d", s_i[6], s_i[4], 4096)
            a("s_lshl_b32 %s, %s, 8", s_t2, s_w)
            a("v_lshrrev_b32 %s, 5, %s\nv_lshlrev_b32 %s, 4, %s\nv_add_u32 %s, %s, %s", t2, lane, t2, t2, t2, s_t2, t2)
            RS = wf[0]
            a("s_nop 7")
            for tb in range(2):
                for g in range(4):
                    a("ds_read_b128 %s, %s offset:%d", RS[g * 4:g * 4 + 4], t2, 8192 + tb * 128 + g * 32)
                a("s_waitcnt lgkmcnt(0)")
                for nb in range(4):
                    G = ACC(nb, tb)
                    for i in range(0, 16, 2):
                        a("v_pk_mul_f32 %s, %s, %s", G[i:i + 2], G[i:i + 2], RS[i:i + 2])
                    for i in range(0, 16, 2):
                        a("v_cvt_pk_bf16_f32 %s, %s, %s", G[i // 2], G[i], G[i + 1])
                    for hf in range(2):
                        a("buffer_store_dwordx4 %s, %s, %s, %s offen offset:%d %s", G[hf * 4:hf * 4 + 4], t1, sW, s_i[3 + tb + 2 * (nb >> 1)], (nb & 1) * 2048 + hf * 512, sc)
        for tb in range(2):
            a("v_mul_f32 %s, %s, %s", sc2[tb][0], s_t, rstd[tb])
            a("v_mov_b32 %s, %s", sc2[tb][1], sc2[tb][0])
            G = ACC(4, tb)
            for i in range(0, 16, 2):
                a("v_pk_mul_f32 %s, %s, %s", G[i:i + 2], G[i:i + 2], sc2[tb])
            for i in range(0, 16, 2):
                a("v_cvt_pk_bf16_f32 %s, %s, %s", G[i // 2], G[i], G[i + 1])
            for hf in range(2):
                a("buffer_store_dwordx4 %s, %s, %s, %s offen offset:%d %s", G[hf * 4:hf * 4 + 4], t0, sW, s_i[1 + tb], hf * 1024, sc)
        stamp()
        dump_stamps("AB"[typeB])
        a("s_endpgm")
    a("%s_end:\ns_endpgm", label)
    return dict(vgpr=256 + 20, accum=256, lds=163840)
```

```python
from asmlib import *

WS_QK = 0
WS_V  = 4 << 20
WS_AF = 8 << 20
WS_SIZE = 18 << 20
QSCALE = 0.25 * 1.4426950408889634

import struct
def f2u(f): return struct.unpack("<I", struct.pack("<f", f))[0]

WST = 20480
XB0 = 61440
XW = 24576

def gen_k1(a, label, opt):
    sc = opt.get("st_flags", "")
    mapping = opt.get("map1", "4x8")
    V = Alloc("v", 1, 96)
    acc = R("v", 96, 160)
    def ACC(nb, tb): return acc[(nb * 2 + tb) * 16:(nb * 2 + tb) * 16 + 16]
    wf = [V(20, 4), R("a", 0, 20)]
    xf = [V(8, 4), V(8, 4)]
    aG = [[V(), V()] for _ in range(4)]
    aQ = [V() for _ in range(4)]
    aX = [V() for _ in range(4)]
    voX = [V(), V()]; voG = V(); voQ = V()
    ssum = [[V(), V()], [V(), V()]]; ssq = [[V(), V()], [V(), V()]]
    cs = [V() for _ in range(5)]
    lane = V(); t0 = V(); t1 = V(); t2 = V(); t3 = V(); t4 = V(); t5 = V()
    sX, sG, sU, sQ, sW = R("s", 4, 4), R("s", 8, 4), R("s", 12, 4), R("s", 16, 4), R("s", 20, 4)
    s_w, s_rt, s_ct, s_stride, s_col, s_w2048, s_w1024, s_xb, s_t, s_t2, s_ones = [R("s", 32 + i) for i in range(11)]
    s_i = [R("s", 48 + i) for i in range(8)]
    stamps = []
    def stamp():
        if opt.get("stamp") is None: return
        i = len(stamps); stamps.append(i)
        a("s_memtime s[%d:%d]" % (60 + 2 * i, 61 + 2 * i))
    def dump_stamps(tag):
        if opt.get("stamp") is None: return
        a("s_waitcnt vmcnt(0)")
        stamp()
        a("s_memrealtime s[96:97]")
        a("s_load_dwordx2 s[4:5], s[0:1], 64\ns_mov_b32 s6, 256\ns_mov_b32 s7, 0x00020000")
        a("s_waitcnt lgkmcnt(0)")
        a("s_cmp_lg_u32 %s, 0\ns_cbranch_scc1 %s_sk%s", s_w, label, tag)
        a("s_mov_b32 %s, 0", s_t2)
        for k, wg in enumerate(opt["stamp"]):
            a("s_cmp_eq_u32 s2, %d\ns_cselect_b32 %s, %d, %s", wg, s_t2, 1 + k * 64, s_t2)
        a("s_cmp_eq_u32 %s, 0\ns_cbranch_scc1 %s_sk%s", s_t2, label, tag)
        a("s_sub_u32 %s, %s, 1", s_t2, s_t2)
        a("v_mov_b32 v1, 0")
        for i in range(1, len(stamps)):
            a("s_sub_u32 %s, s%d, s60\nv_mov_b32 v2, %s", s_t, 60 + 2 * i, s_t)
            a("buffer_store_dword v2, v1, s[4:7], %s offen offset:%d", s_t2, 4 * (i - 1))
        a("v_mov_b32 v2, s94\nbuffer_store_dword v2, v1, s[4:7], %s offen offset:56", s_t2)
        a("v_mov_b32 v2, s96\nbuffer_store_dword v2, v1, s[4:7], %s offen offset:60", s_t2)
        a("%s_sk%s:", label, tag)
    tl = Timeline(a, opt.get("tl"), 0, 60)
    if opt.get("tl"):
        def stamp():
            tl.n = len(stamps); stamps.append(0); tl.stamp()
        def dump_stamps(tag):
            tl.n = len(stamps); tl.dump(s_w)
    a("%s:", label)
    stamp()
    if opt.get("stamp") is not None: a("s_memrealtime s[94:95]")
    a("s_cmp_ge_u32 s2, 256\ns_cbranch_scc1 %s_end", label)
    a("s_load_dwordx4 s[24:27], s[0:1], 0")
    a("s_load_dwordx4 s[28:31], s[0:1], 32")
    a("s_load_dwordx2 s[20:21], s[0:1], 72")
    a("v_and_b32 %s, 63, v0", lane)
    a("v_lshrrev_b32 %s, 6, v0", t0)
    a("s_and_b32 %s, s2, 7\ns_lshr_b32 %s, s2, 3", s_t, s_t2)
    a("v_readfirstlane_b32 %s, %s", s_w, t0)
    if mapping == "4x8":
        a("s_and_b32 %s, %s, 1\ns_lshl_b32 %s, %s, 2", s_rt, s_t, s_rt, s_rt)
        a("s_and_b32 %s, %s, 3\ns_add_u32 %s, %s, %s", s_ct, s_t2, s_rt, s_rt, s_ct)
        a("s_lshr_b32 %s, %s, 1\ns_lshl_b32 %s, %s, 3", s_ct, s_t, s_ct, s_ct)
        a("s_lshr_b32 %s, %s, 2\ns_add_u32 %s, %s, %s", s_t2, s_t2, s_ct, s_ct, s_t2)
    elif mapping == "2x16":
        a("s_and_b32 %s, %s, 3\ns_lshl_b32 %s, %s, 1", s_rt, s_t, s_rt, s_rt)
        a("s_and_b32 %s, %s, 1\ns_add_u32 %s, %s, %s", s_ct, s_t2, s_rt, s_rt, s_ct)
        a("s_lshr_b32 %s, %s, 2\ns_lshl_b32 %s, %s, 4", s_ct, s_t, s_ct, s_ct)
        a("s_lshr_b32 %s, %s, 1\ns_add_u32 %s, %s, %s", s_t2, s_t2, s_ct, s_ct, s_t2)
    else:
        a("s_mov_b32 %s, %s\ns_mov_b32 %s, %s", s_rt, s_t, s_ct, s_t2)
    a("s_lshl_b32 %s, %s, 11\ns_lshl_b32 %s, %s, 10", s_w2048, s_w, s_w1024, s_w)
    a("s_mul_i32 %s, %s, %d\ns_add_u32 %s, %s, %d", s_xb, s_w, XW, s_xb, s_xb, XB0)
    a("s_mov_b32 %s, 0x3f803f80", s_ones)
    a("s_lshl_b32 %s, %s, 7", s_col, s_ct)
    a("s_lshl_b32 %s, %s, 8\ns_sub_u32 %s, %s, %d", s_t, s_ct, s_t, s_t, 28 * 256 - 2048)
    a("s_cmp_ge_u32 %s, 28", s_ct)
    a("s_cselect_b32 %s, %s, %s", s_col, s_t, s_col)
    a("s_movk_i32 %s, 3584\ns_cselect_b32 %s, 3072, %s", s_stride, s_stride, s_stride)
    a("s_lshl_b32 %s, %s, 18\ns_lshl_b32 %s, %s, 16\ns_add_u32 %s, %s, %s", s_t, s_rt, s_t2, s_w, s_i[0], s_t, s_t2)
    for i in range(1, 8): a("s_add_u32 %s, %s, %d", s_i[i], s_i[0], i * 8192)
    a("v_lshrrev_b32 %s, 3, %s", t0, lane)
    a("v_and_b32 %s, 7, %s", t1, lane)
    a("v_lshrrev_b32 %s, 4, %s", t2, lane)
    a("v_xor_b32 %s, %s, %s", t3, t1, t2)
    a("v_lshlrev_b32 %s, 4, %s", t3, t3)
    a("v_lshl_add_u32 %s, %s, 10, %s", voX[0], t0, t3)
    a("v_xor_b32 %s, 64, %s", voX[1], voX[0])
    a("v_and_b32 %s, 1, %s\nv_lshlrev_b32 %s, 2, %s", t3, t2, t3, t3)
    a("v_xor_b32 %s, %s, %s\nv_lshlrev_b32 %s, 4, %s", t3, t1, t3, t3, t3)
    a("s_lshl_b32 %s, %s, 4", s_t, s_w)
    a("v_add_u32 %s, %s, %s", t4, s_t, t0)
    a("v_mul_lo_u32 %s, %s, %s", t4, t4, s_stride)
    a("v_add3_u32 %s, %s, %s, %s", voG, t4, t3, s_col)
    a("v_lshrrev_b32 %s, 2, %s\nv_add_u32 %s, %s, %s", t4, lane, t4, s_t, t4)
    a("v_mul_u32_u24 %s, 3072, %s", t4, t4)
    a("v_and_b32 %s, 3, %s\nv_lshlrev_b32 %s, 4, %s", t3, lane, t3, t3)
    a("s_lshl_b32 %s, %s, 6", s_t, s_ct)
    a("v_add3_u32 %s, %s, %s, %s", voQ, t4, t3, s_t)
    a("s_waitcnt lgkmcnt(0)")
    a("s_mov_b32 s4, s24\ns_mov_b32 s5, s25\ns_mov_b32 s6, 0x200000\ns_mov_b32 s7, 0x00020000")
    a("s_mov_b32 s16, s26\ns_mov_b32 s17, s27\ns_mov_b32 s18, %d\ns_mov_b32 s19, 0x00020000", 512 * 3072)
    a("s_add_u32 %s, s26, 128\ns_addc_u32 %s, s27, 0", s_t, s_t2)
    a("s_cmp_ge_u32 %s, 28", s_ct)
    a("s_cselect_b32 s8, s26, s28\ns_cselect_b32 s9, s27, s29")
    a("s_cselect_b32 s12, %s, s30\ns_cselect_b32 s13, %s, s31", s_t, s_t2)
    a("s_mov_b32 s14, %d", 512 * 3584)
    a("s_cselect_b32 s10, %d, s14\ns_mov_b32 s11, 0x00020000", 512 * 3072)
    a("s_cselect_b32 s14, %d, s14\ns_mov_b32 s15, 0x00020000", 512 * 3072 - 128)
    a("s_mov_b32 s22, %d\ns_mov_b32 s23, 0x00020000", WS_SIZE)

    def dma(c):
        st = c % 3
        g = []
        for j in range(2):
            g.append(["s_mul_i32 %s, %s, %d" % (s_t, s_stride, 64 * c + 8 * j),
                      "s_add_u32 m0, %s, %d" % (s_w2048, st * WST + j * 1024), "s_nop 0",
                      "buffer_load_dwordx4 %s, %s, %s offen lds" % (voG, sG, s_t)])
            g.append(["s_add_u32 m0, %s, %d" % (s_w2048, st * WST + 8192 + j * 1024), "s_nop 0",
                      "buffer_load_dwordx4 %s, %s, %s offen lds" % (voG, sU, s_t)])
        g.append(["s_add_u32 m0, %s, %d" % (s_w1024, st * WST + 16384),
                  "s_mov_b32 %s, %d" % (s_t, 64 * c * 3072),
                  "buffer_load_dwordx4 %s, %s, %s offen lds" % (voQ, sQ, s_t)])
        for i in range(8):
            g.append(["s_add_u32 m0, %s, %d" % (s_xb, st * 8192 + i * 1024 - c * 128), "s_nop 0",
                      "buffer_load_dwordx4 %s, %s, %s offen offset:%d lds" % (voX[i & 1], sX, s_i[i], c * 128)])
        return g
    for c in range(3):
        for g in dma(c): a.ext(g)
    a("v_lshrrev_b32 %s, 5, %s", t0, lane)
    a("v_bfe_u32 %s, %s, 2, 2", t1, lane)
    a("v_bfe_u32 %s, %s, 4, 1", t2, lane)
    a("v_and_b32 %s, 3, %s", t3, lane)
    a("v_lshlrev_b32 %s, 3, %s\nv_lshl_add_u32 %s, %s, 5, %s", t3, t3, t3, t2, t3)
    a("v_lshlrev_b32 %s, 10, %s\nv_lshl_add_u32 %s, %s, 7, %s\nv_add_u32 %s, %s, %s", t4, t0, t4, t1, t4, t4, t4, t3)
    a("v_lshrrev_b32 %s, 1, %s\nv_lshl_add_u32 %s, %s, 6, %s", t5, t1, t4, t5, t4)
    a("v_lshlrev_b32 %s, 9, %s\nv_lshl_add_u32 %s, %s, 6, %s\nv_add_u32 %s, %s, %s", t5, t0, t5, t1, t5, t5, t5, t3)
    for sg in range(4):
        a("s_add_u32 %s, %s, %d\ns_and_b32 %s, %s, 3", s_t, s_w, sg, s_t, s_t)
        a("s_lshl_b32 %s, %s, 11", s_t2, s_t)
        a("v_add_u32 %s, %s, %s", aG[sg][0], s_t2, t4)
        a("v_xor_b32 %s, 64, %s", aG[sg][1], aG[sg][0])
        a("s_lshl_b32 %s, %s, 10", s_t2, s_t)
        a("v_add_u32 %s, %s, %s", aQ[sg], s_t2, t5)
    a("v_and_b32 %s, 31, %s", t1, lane)
    a("v_bfe_u32 %s, %s, 1, 3", t2, lane)
    a("v_lshlrev_b32 %s, 7, %s\nv_add_u32 %s, %s, %s", t1, t1, t1, s_xb, t1)
    for sg in range(4):
        a("s_add_u32 %s, %s, %d\ns_and_b32 %s, %s, 3\ns_lshl_b32 %s, %s, 1", s_t, s_w, sg, s_t, s_t, s_t, s_t)
        a("v_add_u32 %s, %s, %s\nv_xor_b32 %s, %s, %s", t3, s_t, t0, t3, t3, t2)
        a("v_lshl_add_u32 %s, %s, 4, %s", aX[sg], t3, t1)
    for r in ssum[0] + ssum[1] + ssq[0] + ssq[1] + cs: a("v_mov_b32 %s, 0", r)

    def reads(c, sg):
        st = c % 3; p = sg & 1
        g = []
        for tb in range(2):
            g.append("ds_read_b128 %s, %s offset:%d" % (xf[p][tb * 4:tb * 4 + 4], aX[sg], st * 8192 + tb * 4096))
        for nb in range(5):
            for j in range(2):
                if nb < 4: ad, off = aG[sg][nb & 1], st * WST + (nb >> 1) * 8192 + j * 512
                else: ad, off = aQ[sg], st * WST + 16384 + j * 256
                g.append("ds_read_b64_tr_b16 %s, %s offset:%d" % (wf[p][nb * 4 + 2 * j:nb * 4 + 2 * j + 2], ad, off))
        return g
    def dots(sg):
        p = sg & 1
        g = []
        for i in range(4):
            for tb in range(2):
                g.append("v_dot2c_f32_bf16 %s, %s, %s" % (ssum[tb][i & 1], s_ones, xf[p][tb * 4 + i]))
                g.append("v_dot2c_f32_bf16 %s, %s, %s" % (ssq[tb][i & 1], xf[p][tb * 4 + i], xf[p][tb * 4 + i]))
        if sg == 0:
            c2 = []
            for i in range(4):
                for nb in range(5):
                    c2.append("v_dot2c_f32_bf16 %s, %s, %s" % (cs[nb], s_ones, wf[p][nb * 4 + i]))
            g = merge(g, c2)
        return g
    def mfmas(p, typeB, first, W=None, X=None):
        g = []
        W = W or wf[p]; X = X or xf[p]
        for nb in range(5):
            for tb in range(2):
                A, B = W[nb * 4:nb * 4 + 4], X[tb * 4:tb * 4 + 4]
                if typeB and nb < 4: A, B = B, A
                g.append("v_mfma_f32_32x32x16_bf16 %s, %s, %s, %s" % (ACC(nb, tb), A, B, "0" if first else str(ACC(nb, tb))))
        return g

    stamp()
    a("s_waitcnt vmcnt(26)\ns_barrier")
    stamp()
    a.ext(reads(0, 0))
    a("s_cmp_ge_u32 %s, 28\ns_cbranch_scc1 %s_B", s_ct, label)
    for typeB in (False, True):
        if typeB: a("%s_B:", label)
        del stamps[3:]
        spread = opt.get("spread")
        pend = []
        for c in range(8):
            if c: stamp()
            for sg in range(4):
                a("s_waitcnt lgkmcnt(0)")
                m = mfmas(sg & 1, typeB, c == 0 and sg == 0)
                d = dots(sg) if not opt.get("nodot") else []
                rd = reads(c, sg + 1) if sg < 3 else (reads(c + 1, 0) if c < 7 else [])
                body = []
                k = 0; kd_ = 0
                for i, x in enumerate(m):
                    body.append(x)
                    if sg == 3 and c < 7 and i == 1:
                        assert not pend
                        body.append("s_waitcnt vmcnt(%d)" % (13 if c + 2 < 8 else 0))
                        body.append("s_barrier")
                        pend = dma(c + 3) if c + 3 < 8 else []
                    if sg < 3 or i >= 1:
                        for _ in range(2):
                            if k < len(rd): body.append(rd[k]); k += 1
                    tgt = (len(d) * (i + 1) + 9) // 10
                    while kd_ < tgt: body.append(d[kd_]); kd_ += 1
                    if pend and ((sg * 10 + i) % spread == spread - 1) and not (sg == 3 and i < 2):
                        body.extend(pend.pop(0))
                assert k == len(rd)
                a.ext(body)
        stamp()
        a("v_lshlrev_b32 %s, 2, %s", t0, lane)
        a("s_mul_i32 %s, %s, 1280", s_t, s_w)
        a("v_add_u32 %s, %s, %s", t1, s_t, t0)
        for nb in range(5): a("ds_write_b32 %s, %s offset:%d", t1, cs[nb], nb * 256)
        mean = [ssum[0][0], ssum[1][0]]; rstd = [ssq[0][0], ssq[1][0]]
        for tb in range(2):
            for arr in (ssum, ssq):
                x0, x1 = arr[tb]
                a("v_add_f32 %s, %s, %s", x0, x0, x1)
                a("v_mov_b32 %s, %s", x1, x0)
                a("s_nop 1")
                a("v_permlane32_swap_b32 %s, %s", x0, x1)
                a("v_add_f32 %s, %s, %s", x0, x0, x1)
            a("v_mul_f32 %s, %s, %s", mean[tb], "0x%08x" % f2u(-1.0 / 512), mean[tb])
            a("v_mul_f32 %s, %s, %s", t2, mean[tb], mean[tb])
            a("v_mul_f32 %s, %s, %s", rstd[tb], "0x%08x" % f2u(1.0 / 512), rstd[tb])
            a("v_sub_f32 %s, %s, %s", rstd[tb], rstd[tb], t2)
            a("v_max_f32 %s, 0, %s", rstd[tb], rstd[tb])
            a("v_add_f32 %s, %s, %s", rstd[tb], "0x%08x" % f2u(1e-5), rstd[tb])
            a("v_rsq_f32 %s, %s", rstd[tb], rstd[tb])
        a("s_waitcnt lgkmcnt(0)\ns_barrier")
        W0 = wf[0]
        for nb in range(5):
            for w in range(4):
                a("ds_read_b32 %s, %s offset:%d", W0[nb * 4 + w], t0, w * 1280 + nb * 256)
        X0 = xf[0]
        for tb in range(2):
            a("v_cvt_pk_bf16_f32 %s, %s, 0", X0[tb * 4 + 1], mean[tb])
            a("v_lshlrev_b32 %s, 16, %s", t2, X0[tb * 4 + 1])
            a("v_sub_f32 %s, %s, %s", t2, mean[tb], t2)
            a("v_cvt_pk_bf16_f32 %s, %s, %s", X0[tb * 4], mean[tb], t2)
            a("v_mov_b32 %s, 0\nv_mov_b32 %s, 0", X0[tb * 4 + 2], X0[tb * 4 + 3])
        if typeB:
            a("s_lshl_b32 %s, %s, 8", s_t, s_w)
            a("v_and_b32 %s, 31, %s\nv_lshlrev_b32 %s, 2, %s\nv_add_u32 %s, %s, %s", t3, lane, t3, t3, t3, s_t, t3)
            for tb in range(2): a("ds_write_b32 %s, %s offset:%d", t3, rstd[tb], 8192 + tb * 128)
        for nb in range(5):
            a("s_waitcnt lgkmcnt(%d)", min(15, 4 * (4 - nb) + (2 if typeB else 0)))
            r0, r1, r2, r3 = [W0[nb * 4 + i] for i in range(4)]
            a("v_add_f32 %s, %s, %s\nv_add_f32 %s, %s, %s\nv_add_f32 %s, %s, %s", r0, r0, r1, r2, r2, r3, r2, r0, r2)
            a("v_cvt_pk_bf16_f32 %s, %s, %s", r0, r2, r2)
            a("v_lshlrev_b32 %s, 16, %s", r1, r0)
            a("v_sub_f32 %s, %s, %s", r1, r2, r1)
            a("v_cvt_pk_bf16_f32 %s, %s, 0", r1, r1)
            a("v_mov_b32 %s, 0\nv_mov_b32 %s, 0", r2, r3)
        a("s_nop 1")
        a.ext(mfmas(0, typeB, False))
        a("s_lshl_b32 %s, %s, 3\ns_lshl_b32 %s, %s, 1\ns_add_u32 %s, %s, %s", s_t, s_rt, s_t2, s_w, s_i[0], s_t, s_t2)
        a("v_lshlrev_b32 %s, 4, %s", t0, lane)
        a("s_lshr_b32 %s, %s, 4\ns_lshl_b32 %s, %s, 21", s_t, s_ct, s_t, s_t)
        a("s_lshl_b32 %s, %s, 15\ns_add_u32 %s, %s, %s", s_t2, s_i[0], s_t, s_t, s_t2)
        a("s_and_b32 %s, %s, 15\ns_lshl_b32 %s, %s, 11\ns_add_u32 %s, %s, %s", s_t2, s_ct, s_t2, s_t2, s_i[1], s_t, s_t2)
        a("s_add_u32 %s, %s, %d", s_i[2], s_i[1], 32768)
        a("s_cmp_lt_u32 %s, 16\ns_cselect_b32 %s, 0x%08x, 1.0", s_ct, s_t, f2u(QSCALE))
        sc2 = [R("v", xf[1].b, 2), R("v", xf[1].b + 2, 2)]
        if not typeB:
            a("s_mul_i32 %s, %s, %d\ns_lshl_b32 %s, %s, 12\ns_add_u32 %s, %s, %s", s_i[3], s_i[0], 144 * 1024, s_t2, s_ct, s_i[3], s_i[3], s_t2)
            a("s_add_u32 %s, %s, %d", s_i[3], s_i[3], WS_AF + 32 * 1024)
            a("s_add_u32 %s, %s, %d", s_i[4], s_i[3], 144 * 1024)
            for tb in range(2):
                a("v_mul_f32 %s, %s, %s", sc2[tb][0], rstd[tb], rstd[tb])
                a("v_mov_b32 %s, %s", sc2[tb][1], sc2[tb][0])
            a("s_nop 7")
            for nb in range(2):
                for tb in range(2):
                    G, U = ACC(nb, tb), ACC(nb + 2, tb)
                    for i in range(0, 16, 2):
                        a("v_pk_mul_f32 %s, %s, %s", G[i:i + 2], G[i:i + 2], U[i:i + 2])
                    for i in range(0, 16, 2):
                        a("v_pk_mul_f32 %s, %s, %s", G[i:i + 2], G[i:i + 2], sc2[tb])
                    for i in range(0, 16, 2):
                        a("v_cvt_pk_bf16_f32 %s, %s, %s", U[i // 2], G[i], G[i + 1])
                    for hf in range(2):
                        a("buffer_store_dwordx4 %s, %s, %s, %s offen offset:%d %s", U[hf * 4:hf * 4 + 4], t0, sW, s_i[3 + tb], (2 * nb + hf) * 1024, sc)
        else:
            a("v_bfe_u32 %s, %s, 4, 1\nv_lshlrev_b32 %s, 10, %s", t1, lane, t1, t1)
            a("v_lshrrev_b32 %s, 5, %s\nv_lshl_add_u32 %s, %s, 8, %s", t2, lane, t1, t2, t1)
            a("v_and_b32 %s, 15, %s\nv_lshl_add_u32 %s, %s, 4, %s", t2, lane, t1, t2, t1)
            a("s_lshl_b32 %s, %s, 15\ns_sub_u32 %s, %s, 28\ns_lshl_b32 %s, %s, 13\ns_add_u32 %s, %s, %s", s_i[3], s_i[0], s_t2, s_ct, s_t2, s_t2, s_i[3], s_i[3], s_t2)
            a("s_add_u32 %s, %s, %d", s_i[3], s_i[3], WS_V)
            a("s_add_u32 %s, %s, %d", s_i[4], s_i[3], 32768)
            a("s_add_u32 %s, %s, %d", s_i[5], s_i[3], 4096)
            a("s_add_u32 %s, %s, %d", s_i[6], s_i[4], 4096)
            a("s_lshl_b32 %s, %s, 8", s_t2, s_w)
            a("v_lshrrev_b32 %s, 5, %s\nv_lshlrev_b32 %s, 4, %s\nv_add_u32 %s, %s, %s", t2, lane, t2, t2, t2, s_t2, t2)
            RS = wf[0]
            a("s_nop 7")
            for tb in range(2):
                for g in range(4):
                    a("ds_read_b128 %s, %s offset:%d", RS[g * 4:g * 4 + 4], t2, 8192 + tb * 128 + g * 32)
                a("s_waitcnt lgkmcnt(0)")
                for nb in range(4):
                    G = ACC(nb, tb)
                    for i in range(0, 16, 2):
                        a("v_pk_mul_f32 %s, %s, %s", G[i:i + 2], G[i:i + 2], RS[i:i + 2])
                    for i in range(0, 16, 2):
                        a("v_cvt_pk_bf16_f32 %s, %s, %s", G[i // 2], G[i], G[i + 1])
                    for hf in range(2):
                        a("buffer_store_dwordx4 %s, %s, %s, %s offen offset:%d %s", G[hf * 4:hf * 4 + 4], t1, sW, s_i[3 + tb + 2 * (nb >> 1)], (nb & 1) * 2048 + hf * 512, sc)
        for tb in range(2):
            a("v_mul_f32 %s, %s, %s", sc2[tb][0], s_t, rstd[tb])
            a("v_mov_b32 %s, %s", sc2[tb][1], sc2[tb][0])
            G = ACC(4, tb)
            for i in range(0, 16, 2):
                a("v_pk_mul_f32 %s, %s, %s", G[i:i + 2], G[i:i + 2], sc2[tb])
            for i in range(0, 16, 2):
                a("v_cvt_pk_bf16_f32 %s, %s, %s", G[i // 2], G[i], G[i + 1])
            for hf in range(2):
                a("buffer_store_dwordx4 %s, %s, %s, %s offen offset:%d %s", G[hf * 4:hf * 4 + 4], t0, sW, s_i[1 + tb], hf * 1024, sc)
        stamp()
        dump_stamps("AB"[typeB])
        a("s_endpgm")
    a("%s_end:\ns_endpgm", label)
    return dict(vgpr=256 + 20, accum=256, lds=163840)
```

```python
from asmlib import *
from k1 import WS_QK, WS_V, WS_AF, WS_SIZE, f2u

def gen_k3(a, label, opt):
    ld = opt.get("ld_flags", "")
    D = opt.get("k3_depth", 12)
    NS = 20
    V = Alloc("v", 1, 256)
    acc = V(64, 4)
    def ACC(nb, tb): return acc[(nb * 2 + tb) * 16:(nb * 2 + tb) * 16 + 16]
    AF = [V(8, 4) for _ in range(D + 1)]
    WF = [V(8, 4) for _ in range(2)]
    XR = V(8, 4)
    lane, t0, t1, t2, t3, voW, voA, voO = [V() for _ in range(8)]
    aW = [V(), V()]
    sW, sO, sD, sX, sOut = [R("s", 4 + 4 * i, 4) for i in range(5)]
    s_w, s_rt, s_ct, s_t, s_t2, s_lb, s_ao, s_ah, s_wo, s_wd, s_xo = [R("s", 40 + i) for i in range(11)]
    tl = Timeline(a, opt.get("tl"), 2, 60)
    a("%s:", label)
    tl.stamp()
    a("s_cmp_ge_u32 s2, 256\ns_cbranch_scc1 %s_end", label)
    a("s_load_dwordx2 s[4:5], s[0:1], 72")
    a("s_load_dwordx2 s[8:9], s[0:1], 16")
    a("s_load_dwordx2 s[12:13], s[0:1], 48")
    a("s_load_dwordx2 s[16:17], s[0:1], 0")
    a("s_load_dwordx2 s[20:21], s[0:1], 56")
    a("v_and_b32 %s, 63, v0\nv_lshrrev_b32 %s, 6, v0", lane, t0)
    a("s_and_b32 %s, s2, 7\ns_lshr_b32 %s, s2, 3", s_t, s_t2)
    a("v_readfirstlane_b32 %s, %s", s_w, t0)
    mp = opt.get("map3", "8x4")
    if mp == "8x4":
        a("s_lshr_b32 %s, %s, 1\ns_lshl_b32 %s, %s, 3\ns_and_b32 %s, %s, 7\ns_add_u32 %s, %s, %s", s_rt, s_t, s_rt, s_rt, s_ct, s_t2, s_rt, s_rt, s_ct)
        a("s_and_b32 %s, %s, 1\ns_lshl_b32 %s, %s, 2\ns_lshr_b32 %s, %s, 3\ns_add_u32 %s, %s, %s", s_ct, s_t, s_ct, s_ct, s_t2, s_t2, s_ct, s_ct, s_t2)
    else:
        a("s_lshl_b32 %s, %s, 2\ns_and_b32 %s, %s, 3\ns_add_u32 %s, %s, %s", s_rt, s_t, s_ct, s_t2, s_rt, s_rt, s_ct)
        a("s_lshr_b32 %s, %s, 2", s_ct, s_t2)
    a("s_mov_b32 s6, %d\ns_mov_b32 s7, 0x00020000", WS_SIZE)
    a("s_mov_b32 s10, %d\ns_mov_b32 s11, 0x00020000", 512 * 1024)
    a("s_mov_b32 s14, %d\ns_mov_b32 s15, 0x00020000", 1792 * 1024)
    a("s_mov_b32 s18, %d\ns_mov_b32 s19, 0x00020000", 2048 * 1024)
    a("s_mov_b32 s22, %d\ns_mov_b32 s23, 0x00020000", 2048 * 1024)
    a("s_mul_i32 %s, %s, %d", s_lb, s_w, NS * 2048)
    a("s_mul_i32 %s, %s, %d\ns_add_u32 %s, %s, %d", s_t, s_rt, 2 * 144 * 1024, s_t, s_t, WS_AF)
    a("s_lshl_b32 %s, %s, 13\ns_add_u32 %s, %s, %s", s_t2, s_w, s_ao, s_t, s_t2)
    a("s_mul_i32 %s, %s, %d\ns_add_u32 %s, %s, %s\ns_add_u32 %s, %s, %d", s_t2, s_w, 28 * 1024, s_ah, s_t, s_t2, s_ah, s_ah, 32 * 1024)
    a("s_lshl_b32 %s, %s, 17", s_wo, s_w)
    a("s_mul_i32 %s, %s, %d", s_wd, s_w, 448 * 1024)
    a("v_lshlrev_b32 %s, 4, %s", voA, lane)
    a("v_add_u32 %s, %d, %s", voO, 144 * 1024, voA)
    a("v_lshrrev_b32 %s, 3, %s\nv_and_b32 %s, 7, %s\nv_bfe_u32 %s, %s, 4, 1\nv_lshlrev_b32 %s, 2, %s", t0, lane, t1, lane, t2, lane, t2, t2)
    a("v_xor_b32 %s, %s, %s\nv_lshlrev_b32 %s, 4, %s\nv_lshl_add_u32 %s, %s, 10, %s", t2, t1, t2, t2, t2, t2, t0, t2)
    a("s_lshl_b32 %s, %s, 7", s_t, s_ct)
    a("v_add_u32 %s, %s, %s", voW, s_t, t2)
    a("v_lshlrev_b32 %s, 4, %s\nv_lshl_add_u32 %s, %s, 10, %s", t1, t1, t3, t0, t1)
    a("s_lshl_b32 %s, %s, 16\ns_add_u32 %s, %s, %s\ns_lshl_b32 %s, %s, 14\ns_add_u32 %s, %s, %s", s_t2, s_rt, s_xo, s_t, s_t2, s_t2, s_w, s_xo, s_xo, s_t2)
    a("s_waitcnt lgkmcnt(0)")
    def issue(s):
        g = []
        if s < 28: srd, sb, sa, kk = sD, s_wd, s_ah, s
        else: srd, sb, sa, kk = sO, s_wo, s_ao, s - 28
        slot = s % NS
        for j in range(2):
            g.append(["s_add_u32 m0, %s, %d" % (s_lb, slot * 2048 + j * 1024),
                      "s_add_u32 %s, %s, %d" % (s_t, sb, (16 * kk + 8 * j) * 1024),
                      "buffer_load_dwordx4 %s, %s, %s offen lds" % (voW, srd, s_t)])
        F = AF[s % (D + 1)]
        g.append(["s_add_u32 %s, %s, %d" % (s_t, sa, kk * 1024),
                  "buffer_load_dwordx4 %s, %s, %s, %s offen %s" % (F[0:4], voA, sW, s_t, ld)])
        g.append(["buffer_load_dwordx4 %s, %s, %s, %s offen %s" % (F[4:8], voO, sW, s_t, ld)])
        return g
    for p in range(2):
        a("s_add_u32 %s, %s, %d", s_t, s_xo, p * 8192)
        a("buffer_load_dwordx4 %s, %s, %s, %s offen", XR[4 * p:4 * p + 4], t3, sX, s_t)
    for s in range(D):
        for g in issue(s): a.ext(g)
    a("v_lshrrev_b32 %s, 5, %s\nv_bfe_u32 %s, %s, 2, 2\nv_lshl_add_u32 %s, %s, 2, %s\nv_lshlrev_b32 %s, 7, %s", t0, lane, t1, lane, t0, t0, t1, t0, t0)
    a("v_lshrrev_b32 %s, 1, %s\nv_lshl_add_u32 %s, %s, 6, %s", t1, t1, t0, t1, t0)
    a("v_bfe_u32 %s, %s, 4, 1\nv_lshl_add_u32 %s, %s, 5, %s", t1, lane, t0, t1, t0)
    a("v_and_b32 %s, 3, %s\nv_lshl_add_u32 %s, %s, 3, %s", t1, lane, t0, t1, t0)
    a("v_add_u32 %s, %s, %s\nv_xor_b32 %s, 64, %s", aW[0], s_lb, t0, aW[1], aW[0])
    def reads(s):
        slot = s % NS
        return ["ds_read_b64_tr_b16 %s, %s offset:%d" % (WF[s & 1][4 * nb + 2 * j:4 * nb + 2 * j + 2], aW[nb], slot * 2048 + j * 1024) for nb in range(2) for j in range(2)]
    NST = 36
    def vwait(s, issued):
        return "s_waitcnt vmcnt(%d)" % (4 * (issued - 1 - s))
    tl.stamp()
    a(vwait(0, D)); tl.stamp(); a.ext(reads(0))
    for s in range(NST):
        issued = min(NST, s + D)
        if s and s % 6 == 0: tl.stamp()
        pre = []
        a("s_waitcnt lgkmcnt(0)")
        F = AF[s % (D + 1)]
        m = ["v_mfma_f32_32x32x16_bf16 %s, %s, %s, %s" % (ACC(nb, tb), WF[s & 1][4 * nb:4 * nb + 4], F[4 * tb:4 * tb + 4], "0" if s == 0 else str(ACC(nb, tb))) for nb in range(2) for tb in range(2)]
        fill = []
        if s + 1 < NST:
            fill.append([vwait(s + 1, issued)] + reads(s + 1))
        if s + D < NST:
            fill += issue(s + D)
        a.ext(interleave(m, fill))
    tl.stamp()
    a("s_barrier")
    tl.stamp()
    a("v_and_b32 %s, 31, %s\nv_mul_u32_u24 %s, 272, %s\nv_lshrrev_b32 %s, 5, %s\nv_lshl_add_u32 %s, %s, 4, %s", t0, lane, t0, t0, t1, lane, t0, t1, t0)
    a("s_mul_i32 %s, %s, %d", s_t, s_w, 64 * 272)
    a("v_add_u32 %s, %s, %s", t0, s_t, t0)
    a("s_nop 7\ns_nop 7")
    for tb in range(2):
        for nb in range(2):
            for g in range(4):
                a("ds_write_b128 %s, %s offset:%d", t0, ACC(nb, tb)[4 * g:4 * g + 4], tb * 32 * 272 + (nb * 32 + 8 * g) * 4)
    a("v_lshrrev_b32 %s, 3, %s\nv_mul_u32_u24 %s, 272, %s\nv_and_b32 %s, 7, %s\nv_lshl_add_u32 %s, %s, 5, %s", t0, lane, t0, t0, t1, lane, t0, t1, t0)
    a("s_mul_i32 %s, %s, %d", s_t, s_w, 16 * 272)
    a("v_add_u32 %s, %s, %s", t0, s_t, t0)
    a("s_waitcnt lgkmcnt(0)\ns_barrier")
    for p in range(2):
        for w in range(4):
            for h in range(2):
                a("ds_read_b128 %s, %s offset:%d", acc[(p * 8 + w * 2 + h) * 4:(p * 8 + w * 2 + h) * 4 + 4], t0, w * 64 * 272 + p * 8 * 272 + h * 16)
    for p in range(2):
        a("s_waitcnt lgkmcnt(%d)", 8 * (1 - p))
        b = acc[p * 32:p * 32 + 32]
        for e in range(8):
            a("v_add_f32 %s, %s, %s\nv_add_f32 %s, %s, %s\nv_add_f32 %s, %s, %s", b[e], b[e], b[8 + e], b[16 + e], b[16 + e], b[24 + e], b[e], b[e], b[16 + e])
            xr = XR[4 * p + e // 2]
            if e & 1: a("v_and_b32 %s, 0xffff0000, %s", t1, xr)
            else: a("v_lshlrev_b32 %s, 16, %s", t1, xr)
            a("v_add_f32 %s, %s, %s", b[e], b[e], t1)
        for e in range(4): a("v_cvt_pk_bf16_f32 %s, %s, %s", b[e], b[2 * e], b[2 * e + 1])
        a("s_add_u32 %s, %s, %d", s_t, s_xo, p * 8192)
        a("buffer_store_dwordx4 %s, %s, %s, %s offen", b[0:4], t3, sOut, s_t)
    tl.stamp()
    tl.dump(s_w, tmp=24)
    a("%s_end:\ns_endpgm", label)
    return dict(vgpr=256, accum=256, lds=163840)
```

```python
import sys, json
from asmlib import *
import k1
HEADER = open("cdna_kernels/%s.s.ref" % NAME).read().split("; Override launch")[0]

def build(kernels, opt):
    a = Asm()
    infos = []
    for label, fn, grid in kernels:
        a.L.append(".globl %s\n.p2align 8\n.type %s,@function" % (label, label))
        infos.append(fn(a, label, opt))
    h = HEADER
    if len(kernels) == 1 and kernels[0][0] == NAME + "_kernel":
        h += "; @launch grid=(%d,1,1) block=(%d,1,1) lds=%d\n" % (kernels[0][2], infos[0].get("block", 256), infos[0]["lds"])
    else:
        for (label, fn, grid), inf in zip(kernels, infos):
            h += "; @launch kernel=%s grid=(%d,1,1) block=(%d,1,1) lds=%d\n" % (label, grid, inf.get("block", 256), inf["lds"])
    h += '.amdgcn_target "amdgcn-amd-amdhsa--gfx950"\n.text\n'
    t = '.section .rodata,"a"\n'
    for (label, fn, grid), inf in zip(kernels, infos):
        t += ".p2align 6\n" + kd(label, inf["vgpr"], inf["accum"]) + "\n"
    return h + a.text() + t

if __name__ == "__main__":
    out = sys.argv[1]
    which = sys.argv[2]
    opt = json.loads(sys.argv[3]) if len(sys.argv) > 3 else {}
    ks = []
    for w in which.split(","):
        if w == "k1": ks.append(("k1_kernel", k1.gen_k1, 256))
        elif w == "k1s":
            import k1s; ks.append(("k1_kernel", k1s.gen_k1, 256))
        elif w == "fz":
            import fz; ks.append(("fz_kernel", fz.gen, 256))
        elif w == "g1":
            import g1; ks.append(("g1_kernel", g1.gen, 256))
        elif w == "att":
            import att; ks.append(("att_kernel", att.gen_att, 256))
        elif w == "k3":
            import k3; ks.append(("k3_kernel", k3.gen_k3, 256))
    if len(ks) == 1: ks = [(NAME + "_kernel", ks[0][1], ks[0][2])]
    open(out, "w").write(build(ks, opt))
```

```python
from asmlib import *
import struct, re
def f2u(f): return struct.unpack("<I", struct.pack("<f", f))[0]
def fx(f): return "0x%08x" % f2u(f)

WS_QK = 0
WS_V  = 4 << 20
WS_AF = 8 << 20
WS_CS = 18 << 20
WS_ST = WS_CS + (512 << 10)
WS_F1 = 19 << 20
WS_F2 = WS_F1 + 4096
WS_SIZE = 20 << 20
QSCALE = 0.25 * 1.4426950408889634
NEG = "0xf149f2ca"
WST = 20480; XB0 = 61440; XW = 24576; SCR = XB0 + 4 * XW
SPIN = 1 << 14

def resolve(lines):
    out = []; ops = []; saved = {}
    for l in lines:
        s = l.strip()
        if s.startswith("@wait "):
            tags = s.split()[1:]
            idx = -1
            for i, t in enumerate(ops):
                if t in tags: idx = i
            if idx < 0: continue
            n = len(ops) - 1 - idx
            out.append("    s_waitcnt vmcnt(%d)" % min(n, 63))
            ops = ops[idx + 1:]
        elif s.startswith("@save "): saved[s.split()[1]] = list(ops)
        elif s.startswith("@restore "): ops = list(saved[s.split()[1]])
        elif s.startswith("@clear"): ops = []
        else:
            m = re.search(r";\s*@vm (\S+)", l)
            if m: ops.append(m.group(1)); l = l[:m.start()].rstrip()
            elif s.startswith(("buffer_", "global_")): ops.append("?")
            if s.startswith("s_waitcnt") and "vmcnt(0)" in s: ops = []
            out.append(l)
    return out

def gen(a0, label, opt):
    a = Asm()
    P_POS = opt.get("pos", 1)
    SC = "sc1"
    ool = Asm()
    V = Alloc("v", 1, 96)
    acc = R("v", 96, 160)
    def ACC(nb, tb): return acc[(nb * 2 + tb) * 16:(nb * 2 + tb) * 16 + 16]
    lane = V(); vl16 = V(); voD = V()
    wf = [V(20, 4), R("a", 0, 20)]
    xf = [V(8, 4), V(8, 4)]
    VO4 = V(4, 4); voX = [VO4[0], VO4[1]]; voG = VO4[2]; voQ = VO4[3]
    aG = [[V(), V()] for _ in range(4)]
    aQ = [V() for _ in range(4)]
    aX = [V() for _ in range(4)]
    PL = V(36, 4)
    t0, t1, t2, t3, t4, t5 = [PL[30 + i] for i in range(6)]
    WD = [R("a", 20 + 8 * s, 8) for s in range(28)]
    sX, sG, sU, sQ, sW, sD, sO, sOut, sDbg = [R("s", 4 + 4 * i, 4) for i in range(9)]
    (s_w, s_rt, s_ct, s_stride, s_w2048, s_w1024, s_xb, s_t, s_t2, s_ones, s_nonce, s_rt2, s_ct2, s_st8, s_wd, s_wo) = [R("s", 40 + i) for i in range(16)]
    s_i = [R("s", 56 + i) for i in range(8)]
    s_cur, s_t3 = R("s", 64), R("s", 65)
    s_m = R("s", 66, 2); s_need = R("s", 68, 2); s_cnt = R("s", 70); s_done = R("s", 71)
    tl = Timeline(a, opt.get("tl"), 0, 72)
    def stamp(n, emit=True):
        if not tl.on: return None
        tl.n = n
        return tl.stamp(emit)
    a("%s:", label)
    stamp(0)
    a("s_cmp_ge_u32 s2, %d\ns_cbranch_scc1 %s_end", 0 if opt.get("empty") else 256, label)
    for srd, off in ((sX, 0), (sQ, 8), (sG, 32), (sU, 40), (sW, 72), (sDbg, 64), (sD, 48), (sO, 16), (sOut, 56)):
        a("s_load_dwordx2 %s, s[0:1], %d", srd[0:2], off)
    a("s_memrealtime %s", s_m)
    a("v_and_b32 %s, 63, v0", lane)
    a("v_lshrrev_b32 %s, 6, v0", t0)
    a("s_and_b32 %s, s2, 7\ns_lshr_b32 %s, s2, 3", s_t, s_t2)
    a("v_readfirstlane_b32 %s, %s", s_w, t0)
    a("s_lshl_b32 %s, %s, 2\ns_and_b32 %s, %s, 3\ns_add_u32 %s, %s, %s", s_rt2, s_t, s_ct, s_t2, s_rt2, s_rt2, s_ct)
    a("s_lshr_b32 %s, %s, 2", s_ct2, s_t2)
    a("s_and_b32 %s, %s, 7", s_rt, s_rt2)
    a("s_lshr_b32 %s, %s, 1\ns_lshl_b32 %s, %s, 3\ns_add_u32 %s, %s, %s", s_ct, s_t, s_ct, s_ct, s_ct, s_ct, s_ct2)
    a("s_lshl_b32 %s, %s, 11\ns_lshl_b32 %s, %s, 10", s_w2048, s_w, s_w1024, s_w)
    a("s_mul_i32 %s, %s, %d\ns_add_u32 %s, %s, %d", s_xb, s_w, XW, s_xb, s_xb, XB0)
    a("s_mov_b32 %s, 0x3f803f80", s_ones)
    s_col = s_t3
    a("s_lshl_b32 %s, %s, 7", s_col, s_ct)
    a("s_lshl_b32 %s, %s, 8\ns_sub_u32 %s, %s, %d", s_t, s_ct, s_t, s_t, 28 * 256 - 2048)
    a("s_cmp_ge_u32 %s, 28", s_ct)
    a("s_cselect_b32 %s, %s, %s", s_col, s_t, s_col)
    a("s_movk_i32 %s, 3584\ns_cselect_b32 %s, 3072, %s", s_stride, s_stride, s_stride)
    a("s_lshl_b32 %s, %s, 3", s_st8, s_stride)
    a("s_lshl_b32 %s, %s, 18\ns_lshl_b32 %s, %s, 16\ns_add_u32 %s, %s, %s", s_t, s_rt, s_t2, s_w, s_i[0], s_t, s_t2)
    for i in range(1, 8): a("s_add_u32 %s, %s, %d", s_i[i], s_i[0], i * 8192)
    a("s_lshl_b32 %s, %s, 13\ns_add_u32 %s, %s, %s\ns_add_u32 %s, %s, %s", s_t2, s_ct, s_t, s_t, s_t2, s_wo, s_t, s_w2048)
    a("v_lshlrev_b32 %s, 4, %s", vl16, lane)
    a("v_lshrrev_b32 %s, 3, %s", t0, lane)
    a("v_and_b32 %s, 7, %s", t1, lane)
    a("v_lshrrev_b32 %s, 4, %s", t2, lane)
    a("v_xor_b32 %s, %s, %s", t3, t1, t2)
    a("v_lshlrev_b32 %s, 4, %s", t3, t3)
    a("v_lshl_add_u32 %s, %s, 10, %s", voX[0], t0, t3)
    a("v_xor_b32 %s, 64, %s", voX[1], voX[0])
    a("v_and_b32 %s, 1, %s\nv_lshlrev_b32 %s, 2, %s", t3, t2, t3, t3)
    a("v_xor_b32 %s, %s, %s\nv_lshlrev_b32 %s, 4, %s", t3, t1, t3, t3, t3)
    if opt.get("dx"): a("s_xor_b32 %s, %s, %d", s_ct2, s_ct2, opt["dx"])
    a("s_lshl_b32 %s, %s, 7", s_t, s_ct2)
    a("v_lshl_add_u32 %s, %s, 10, %s\nv_add_u32 %s, %s, %s", voD, t0, t3, voD, s_t, voD)
    a("s_lshl_b32 %s, %s, 4", s_t, s_w)
    a("v_add_u32 %s, %s, %s", t4, s_t, t0)
    a("v_mul_lo_u32 %s, %s, %s", t4, t4, s_stride)
    a("v_add3_u32 %s, %s, %s, %s", voG, t4, t3, s_col)
    a("v_lshrrev_b32 %s, 2, %s\nv_add_u32 %s, %s, %s", t4, lane, t4, s_t, t4)
    a("v_mul_u32_u24 %s, 3072, %s", t4, t4)
    a("v_and_b32 %s, 3, %s\nv_lshlrev_b32 %s, 4, %s", t3, lane, t3, t3)
    a("s_lshl_b32 %s, %s, 6", s_t, s_ct)
    a("v_add3_u32 %s, %s, %s, %s", voQ, t4, t3, s_t)
    a("s_mov_b32 %s, 0", s_cur)
    def adv(p):
        g = []
        if p == P_POS: g.append("s_mov_b32 %s, %s" % (s_t, s_rt))
        else:
            q = p if p < P_POS else p - 1
            g += ["s_cmp_le_u32 %s, %d" % (s_rt, q), "s_cselect_b32 %s, %d, %d" % (s_t, q + 1, q)]
        g += ["s_sub_i32 %s, %s, %s" % (s_t2, s_t, s_cur), "s_mov_b32 %s, %s" % (s_cur, s_t),
              "s_lshl_b32 %s, %s, 7" % (s_t, s_t2),
              "v_add_u32 %s, %s, %s" % (voX[0], s_t, voX[0]), "v_add_u32 %s, %s, %s" % (voX[1], s_t, voX[1]),
              "s_mul_i32 %s, %s, %d" % (s_t, s_t2, 64 * 3072), "s_lshl_b32 %s, %s, 3" % (s_t2, s_t2),
              "v_add_u32 %s, %s, %s" % (voQ, s_t, voQ),
              "s_mul_i32 %s, %s, %s" % (s_t2, s_t2, s_st8),
              "v_add_u32 %s, %s, %s" % (voG, s_t2, voG)]
        return g
    a.ext(adv(0))
    for srd, n in ((sX, 0x200000), (sQ, 512 * 3072), (sW, WS_SIZE), (sDbg, 256), (sD, 1792 * 1024), (sO, 512 * 1024), (sOut, 0x200000)):
        a("s_mov_b32 %s, %d\ns_mov_b32 %s, 0x00020000", srd[2], n, srd[3])
    a("s_cmp_ge_u32 %s, 28", s_ct)
    a("s_mov_b32 s14, %d", 512 * 3584)
    a("s_cselect_b32 s10, %d, s14\ns_mov_b32 s11, 0x00020000", 512 * 3072)
    a("s_cselect_b32 s14, %d, s14\ns_mov_b32 s15, 0x00020000", 512 * 3072 - 128)
    if opt.get("tlp"): stamp(3)
    a("s_waitcnt lgkmcnt(0)")
    if opt.get("tlp"): stamp(4)
    a("s_add_u32 %s, s16, 128\ns_addc_u32 %s, s17, 0", s_t, s_t2)
    a("s_cmp_ge_u32 %s, 28", s_ct)
    a("s_cselect_b32 s8, s16, s8\ns_cselect_b32 s9, s17, s9")
    a("s_cselect_b32 s12, %s, s12\ns_cselect_b32 s13, %s, s13", s_t, s_t2)

    def dma(p):
        st = p % 3; tag = " ; @vm d%d" % p
        g = []
        def x(i):
            return ["s_add_u32 m0, %s, %d" % (s_xb, st * 8192 + i * 1024), "s_nop 0",
                    "buffer_load_dwordx4 %s, %s, %s offen lds" % (voX[i & 1], sX, s_i[i]) + tag]
        for j in range(2):
            so = "0" if j == 0 else str(s_st8)
            g.append(["s_add_u32 m0, %s, %d" % (s_w2048, st * WST + j * 1024), "s_nop 0",
                      "buffer_load_dwordx4 %s, %s, %s offen lds" % (voG, sG, so) + tag])
            g.append(["s_add_u32 m0, %s, %d" % (s_w2048, st * WST + 8192 + j * 1024), "s_nop 0",
                      "buffer_load_dwordx4 %s, %s, %s offen lds" % (voG, sU, so) + tag])
        g.append(["s_add_u32 m0, %s, %d" % (s_w1024, st * WST + 16384), "s_nop 0",
                  "buffer_load_dwordx4 %s, %s, 0 offen lds" % (voQ, sQ) + tag])
        for i in range(8): g.append(x(i))
        if p > 0: g[0] = adv(p) + g[0]
        return g
    for g in dma(0): a.ext(g)
    if opt.get("tlp"): stamp(5)
    if opt.get("tlp") == 2: a("@wait d0"); stamp(1)
    XR0, XR1 = PL[0:4], PL[4:8]
    a("buffer_load_dwordx4 %s, %s, %s, %s offen", XR0, vl16, sX, s_wo)
    a("buffer_load_dwordx4 %s, %s, %s, %s offen offset:1024", XR1, vl16, sX, s_wo)
    a("s_lshl_b32 %s, %s, 4\ns_add_u32 %s, %s, s2\ns_cmp_ge_u32 %s, 16\ns_cbranch_scc1 %s_nn", s_t, s_w, s_t, s_t, s_t, label)
    a("s_mul_i32 %s, %s, 0x9e3779b1\ns_xor_b32 %s, %s, %s\ns_or_b32 %s, %s, 1", s_t, s_m[1], s_t, s_t, s_m[0], s_t, s_t)
    a("v_mov_b32 %s, %s\nv_mov_b32 %s, 0", t0, s_t, t1)
    a("s_mov_b64 exec, 1")
    a("buffer_atomic_cmpswap %s, off, %s, 0 sc1 ; @vm skip", R("v", t0.b, 2), sDbg)
    a("s_mov_b64 exec, -1")
    a("%s_nn:", label)
    a.L.append("@dropskip")
    for g in dma(1): a.ext(g)
    a("v_lshrrev_b32 %s, 5, %s", t0, lane)
    a("v_bfe_u32 %s, %s, 2, 2", t1, lane)
    a("v_bfe_u32 %s, %s, 4, 1", t2, lane)
    a("v_and_b32 %s, 3, %s", t3, lane)
    a("v_lshlrev_b32 %s, 3, %s\nv_lshl_add_u32 %s, %s, 5, %s", t3, t3, t3, t2, t3)
    a("v_lshlrev_b32 %s, 10, %s\nv_lshl_add_u32 %s, %s, 7, %s\nv_add_u32 %s, %s, %s", t4, t0, t4, t1, t4, t4, t4, t3)
    a("v_lshrrev_b32 %s, 1, %s\nv_lshl_add_u32 %s, %s, 6, %s", t5, t1, t4, t5, t4)
    a("v_lshlrev_b32 %s, 9, %s\nv_lshl_add_u32 %s, %s, 6, %s\nv_add_u32 %s, %s, %s", t5, t0, t5, t1, t5, t5, t5, t3)
    for sg in range(4):
        a("s_add_u32 %s, %s, %d\ns_and_b32 %s, %s, 3", s_t, s_w, sg, s_t, s_t)
        a("s_lshl_b32 %s, %s, 11", s_t2, s_t)
        a("v_add_u32 %s, %s, %s", aG[sg][0], s_t2, t4)
        a("v_xor_b32 %s, 64, %s", aG[sg][1], aG[sg][0])
        a("s_lshl_b32 %s, %s, 10", s_t2, s_t)
        a("v_add_u32 %s, %s, %s", aQ[sg], s_t2, t5)
    a("v_and_b32 %s, 31, %s", t1, lane)
    a("v_bfe_u32 %s, %s, 1, 3", t2, lane)
    a("v_lshlrev_b32 %s, 7, %s\nv_add_u32 %s, %s, %s", t1, t1, t1, s_xb, t1)
    for sg in range(4):
        a("s_add_u32 %s, %s, %d\ns_and_b32 %s, %s, 3\ns_lshl_b32 %s, %s, 1", s_t, s_w, sg, s_t, s_t, s_t, s_t)
        a("v_add_u32 %s, %s, %s\nv_xor_b32 %s, %s, %s", t3, s_t, t0, t3, t3, t2)
        a("v_lshl_add_u32 %s, %s, 4, %s", aX[sg], t3, t1)
    ss = [PL[8 + i] for i in range(4)]
    SG = PL[12:16]; cs = [PL[16 + i] for i in range(5)]; CQ = PL[16:20]; vn = PL[21]
    for r in ss + cs: a("v_mov_b32 %s, 0", r)
    a("s_mul_i32 %s, %s, %d", s_wd, s_w, 448 * 1024)

    def reads(c, sg):
        st = c % 3; p = sg & 1
        g = []
        for tb in range(2):
            g.append("ds_read_b128 %s, %s offset:%d" % (xf[p][tb * 4:tb * 4 + 4], aX[sg], st * 8192 + tb * 4096))
        for nb in range(5):
            for j in range(2):
                if nb < 4: ad, off = aG[sg][nb & 1], st * WST + (nb >> 1) * 8192 + j * 512
                else: ad, off = aQ[sg], st * WST + 16384 + j * 256
                g.append("ds_read_b64_tr_b16 %s, %s offset:%d" % (wf[p][nb * 4 + 2 * j:nb * 4 + 2 * j + 2], ad, off))
        return g
    def mfmas(p, typeB, first):
        g = []
        for nb in range(5):
            for tb in range(2):
                A, B = wf[p][nb * 4:nb * 4 + 4], xf[p][tb * 4:tb * 4 + 4]
                if typeB and nb < 4: A, B = B, A
                g.append("v_mfma_f32_32x32x16_bf16 %s, %s, %s, %s" % (ACC(nb, tb), A, B, "0" if first else str(ACC(nb, tb))))
        return g
    def wdload(k):
        s, j = k >> 1, k & 1
        return ["s_add_u32 %s, %s, %d" % (s_t3, s_wd, (16 * s + 8 * j) * 1024),
                "buffer_load_dwordx4 %s, %s, %s, %s offen ; @vm wd%d" % (WD[s][4 * j:4 * j + 4], voD, sD, s_t3, s)]
    WO_OFF = [16384 + (k & 7) * 1024 if k < 8 else (k & 7) * 1024 for k in range(16)]
    def woload(k):
        return ["s_add_u32 m0, %s, %d" % (s_xb, WO_OFF[k]), "s_add_u32 %s, %s, %d" % (s_t3, s_wo, k * 8192),
                "buffer_load_dwordx4 %s, %s, %s offen lds ; @vm wo" % (voD, sO, s_t3)]

    if opt.get("tlp") != 2: stamp(1)
    a("@wait d0\ns_barrier")
    stamp(2)
    a.ext(reads(0, 0))
    a("@save br")
    a("s_cmp_ge_u32 %s, 28\ns_cbranch_scc1 %s_B", s_ct, label)
    SL = [PL[0:4], PL[4:8]]; C0, C1 = PL[8:12], PL[12:16]
    AB = PL[16:34]; T4, T5 = PL[34], PL[35]
    for typeB in (False, True):
        tg = "AB"[typeB]
        if typeB: a("%s_B:\n@restore br", label)
        fill = [[] for _ in range(320)]
        def put(g0, groups, per=2):
            for k, gr in enumerate(groups):
                fill[g0 + k // per].append(gr if isinstance(gr, list) else [gr])
            return g0 + (len(groups) + per - 1) // per
        st = ["@wait st"]
        for i in range(4):
            st += ["v_dot2c_f32_bf16 %s, %s, %s" % (ss[0], s_ones, XR0[i]), "v_dot2c_f32_bf16 %s, %s, %s" % (ss[1], XR0[i], XR0[i]),
                   "v_dot2c_f32_bf16 %s, %s, %s" % (ss[2], s_ones, XR1[i]), "v_dot2c_f32_bf16 %s, %s, %s" % (ss[3], XR1[i], XR1[i])]
        st += [["s_nop 2", "v_permlane32_swap_b32 %s, %s" % (ss[0], ss[2])], "v_permlane32_swap_b32 %s, %s" % (ss[1], ss[3]),
               "v_add_f32 %s, %s, %s" % (ss[0], ss[0], ss[2]), "v_add_f32 %s, %s, %s" % (ss[1], ss[1], ss[3]),
               ["s_nop 1", "v_permlane16_swap_b32 %s, %s" % (ss[0], ss[1])],
               "v_add_f32 %s, %s, %s" % (ss[0], ss[0], ss[1])]
        for sh in (8, 4, 2, 1):
            st.append(["s_nop 1", "v_add_f32_dpp %s, %s, %s row_ror:%d row_mask:0xf bank_mask:0xf" % (ss[0], ss[0], ss[0], sh)])
        st += ["v_mov_b32 %s, %s" % (ss[1], ss[0]), ["s_nop 1", "v_permlane16_swap_b32 %s, %s" % (ss[0], ss[1])],
               "v_mul_f32 %s, %s, %s" % (SG[0], fx(-1.0 / 512), ss[0]),
               "v_mul_f32 %s, %s, %s" % (ss[1], fx(1.0 / 512), ss[1]),
               "v_fma_f32 %s, -%s, %s, %s" % (ss[1], SG[0], SG[0], ss[1]),
               "v_max_f32 %s, 0, %s" % (ss[1], ss[1]),
               "v_add_f32 %s, %s, %s" % (SG[2], fx(1e-5), ss[1]),
               "v_rsq_f32 %s, %s" % (SG[1], SG[2])]
        put(4, st, 2)
        g0 = 40 * P_POS
        put(g0, ["v_dot2c_f32_bf16 %s, %s, %s" % (cs[nb], s_ones, wf[0][nb * 4 + i]) for i in range(4) for nb in range(5)], 2)
        put(g0 + 12, ["v_mov_b32 %s, %s" % (T4, cs[4]), "v_permlane32_swap_b32 %s, %s" % (cs[0], cs[1]), "v_permlane32_swap_b32 %s, %s" % (cs[2], cs[3]),
                      "v_permlane32_swap_b32 %s, %s" % (cs[4], T4),
                      "v_add_f32 %s, %s, %s" % (CQ[0], cs[0], cs[1]), "v_add_f32 %s, %s, %s" % (CQ[1], cs[2], cs[3]), "v_add_f32 %s, %s, %s" % (CQ[2], cs[4], T4),
                      ["s_add_u32 %s, %s, %d" % (s_t3, s_w1024, SCR), "v_add_u32 %s, %s, %s" % (T4, s_t3, vl16)],
                      "v_add_u32 %s, %d, %s" % (T5, SCR, vl16),
                      "ds_write_b128 %s, %s" % (T4, CQ)], 2)
        g0 = 40 * max(1, P_POS) + 32
        LL = [PL[0:4], PL[4:8], PL[8:12], CQ]
        g1 = put(g0, [["@wait nonce", "v_readfirstlane_b32 %s, %s" % (s_nonce, vn)],
                 ["s_cmp_eq_u32 %s, 0" % s_nonce, "s_cbranch_scc1 %s_rn%s" % (label, tg), "%s_rnr%s:" % (label, tg)],
                 ["v_lshrrev_b32 %s, 5, %s" % (T4, lane), "v_lshlrev_b32 %s, 4, %s" % (T4, T4)],
                 ["v_mov_b32 %s, %s" % (SG[3], s_nonce)],
                 ["s_lshr_b32 %s, %s, 6" % (s_t3, s_wo), "s_add_u32 %s, %s, %d" % (s_t3, s_t3, WS_ST), "s_mov_b32 exec_lo, 1", "s_mov_b32 exec_hi, 1", "buffer_store_dwordx4 %s, %s, %s, %s offen %s" % (SG, T4, sW, s_t3, SC), "s_mov_b64 exec, -1"]] , 1)
        put(g0 + 6, ["ds_read_b128 %s, %s offset:%d" % (LL[k], T5, k * 1024) for k in range(4)], 2)
        ool("%s_rn%s:", label, tg)
        ool("s_mov_b32 %s, %d", s_cnt, SPIN)
        ool("%s_rn%s_l:", label, tg)
        ool("buffer_load_dword %s, off, %s, 0 sc1\ns_waitcnt vmcnt(0)\nv_readfirstlane_b32 %s, %s", vn, sDbg, s_nonce, vn)
        ool("s_cmp_lg_u32 %s, 0\ns_cbranch_scc1 %s_rnr%s", s_nonce, label, tg)
        ool("s_sleep 2\ns_sub_u32 %s, %s, 1\ns_cmp_lg_u32 %s, 0\ns_cbranch_scc1 %s_rn%s_l\ns_branch %s_rnr%s", s_cnt, s_cnt, s_cnt, label, tg, label, tg)
        ad = []
        for e in range(3): ad += ["v_add_f32 %s, %s, %s" % (LL[0][e], LL[0][e], LL[1][e]), "v_add_f32 %s, %s, %s" % (CQ[e], CQ[e], LL[2][e])]
        for e in range(3): ad += ["v_add_f32 %s, %s, %s" % (CQ[e], CQ[e], LL[0][e])]
        ad += [["v_mov_b32 %s, %s" % (CQ[3], s_nonce), "s_lshl_b32 %s, %s, 3" % (s_t3, s_ct), "s_add_u32 %s, %s, %s" % (s_t3, s_t3, s_rt),
                "s_lshl_b32 %s, %s, 10" % (s_t3, s_t3), "s_add_u32 %s, %s, %d" % (s_t3, s_t3, WS_CS),
                "s_lshl_b32 %s, %s, 4" % (s_cnt, s_w), "s_lshl_b64 exec, 0xffff, %s" % s_cnt,
                "buffer_store_dwordx4 %s, %s, %s, %s offen %s" % (CQ, vl16, sW, s_t3, SC), "s_mov_b64 exec, -1",
                "s_lshl_b32 %s, %s, 17" % (s_wo, s_w)]]
        put(g0 + 8, ad, 2)
        def gloads():
            return [["v_and_b32 %s, 31, %s" % (T4, lane), "v_lshlrev_b32 %s, 4, %s" % (T4, T4),
                     "s_lshr_b32 %s, %s, 6" % (s_t3, s_i[0]), "s_add_u32 %s, %s, %d" % (s_t3, s_t3, WS_ST),
                     "buffer_load_dwordx4 %s, %s, %s, %s offen %s ; @vm g" % (SL[0], T4, sW, s_t3, SC)],
                    ["buffer_load_dwordx4 %s, %s, %s, %s offen offset:512 %s ; @vm g" % (SL[1], T4, sW, s_t3, SC)],
                    ["s_lshl_b32 %s, %s, 13" % (s_t3, s_ct), "s_add_u32 %s, %s, %s" % (s_t3, s_t3, s_w2048), "s_add_u32 %s, %s, %d" % (s_t3, s_t3, WS_CS),
                     "buffer_load_dwordx4 %s, %s, %s, %s offen %s ; @vm g" % (C0, vl16, sW, s_t3, SC),
                     "buffer_load_dwordx4 %s, %s, %s, %s offen offset:1024 %s ; @vm g" % (C1, vl16, sW, s_t3, SC)]]
        gl = gloads(); gl = [gl[0] + gl[1], gl[2]]
        def gcheck():
            return ["v_xor_b32 %s, %s, %s" % (SL[0][3], s_nonce, SL[0][3]), "v_xor_b32 %s, %s, %s" % (SL[1][3], s_nonce, SL[1][3]),
                    "v_xor_b32 %s, %s, %s" % (C0[3], s_nonce, C0[3]), "v_xor_b32 %s, %s, %s" % (C1[3], s_nonce, C1[3]),
                    "v_or3_b32 %s, %s, %s, %s" % (C0[3], C0[3], C1[3], SL[0][3]), "v_or_b32 %s, %s, %s" % (C0[3], C0[3], SL[1][3]),
                    "v_cmp_ne_u32 %s, 0, %s" % (s_m, C0[3])]
        GC = opt.get("gchk", 260)
        c1 = [["@wait g"] + gcheck()[:2]] + gcheck()[2:] + [
              ["s_cmp_lg_u64 %s, 0" % s_m, "s_cbranch_scc1 %s_rg%s" % (label, tg), "%s_rgr%s:" % (label, tg)]]
        c1 += ["v_add_f32 %s, %s, %s" % (C0[e], C0[e], C1[e]) for e in range(3)]
        c1 += [["s_add_u32 %s, %s, %d" % (s_t3, s_w1024, SCR), "v_add_u32 %s, %s, %s" % (T4, s_t3, vl16)], "ds_write_b128 %s, %s" % (T4, C0)]
        ge = put(GC, c1, 2); assert ge <= 270
        ool("%s_rg%s:", label, tg)
        ool("s_mov_b32 %s, %d", s_cnt, SPIN)
        ool("%s_rg%s_l:", label, tg)
        ool("s_sleep 2")
        for g in gloads(): ool.ext([re.sub(r" ; @vm.*", "", x) for x in g])
        ool("s_waitcnt vmcnt(0)"); ool.ext(gcheck())
        ool("s_cmp_eq_u64 %s, 0\ns_cbranch_scc1 %s_rgr%s", s_m, label, tg)
        ool("s_sub_u32 %s, %s, 1\ns_cmp_lg_u32 %s, 0\ns_cbranch_scc1 %s_rg%s_l\ns_branch %s_rgr%s", s_cnt, s_cnt, s_cnt, label, tg, label, tg)
        L2 = [C0, C1, AB[0:4], VO4]
        put(272, ["ds_read_b128 %s, %s offset:%d" % (L2[k], T5, k * 1024) for k in range(4)], 1)
        b = ["s_mov_b32 %s, 0" % s_m[0], "s_mov_b32 %s, -1" % s_m[1]]
        for tb in range(2):
            B = AB[6 + 6 * tb:12 + 6 * tb]; mean = SL[tb][0]
            b += ["v_cvt_pk_bf16_f32 %s, %s, 0" % (B[1], mean), "v_lshlrev_b32 %s, 16, %s" % (T4, B[1]), "v_sub_f32 %s, %s, %s" % (T4, mean, T4),
                  "v_cvt_pk_bf16_f32 %s, %s, %s" % (B[0], mean, T4),
                  "v_cndmask_b32 %s, 0, %s, %s" % (B[4], B[0], s_m), "v_cndmask_b32 %s, 0, %s, %s" % (B[5], B[1], s_m),
                  "v_cndmask_b32 %s, %s, 0, %s" % (B[0], B[0], s_m), "v_cndmask_b32 %s, %s, 0, %s" % (B[1], B[1], s_m),
                  "v_mov_b32 %s, 0" % B[2], "v_mov_b32 %s, 0" % B[3]]
        if typeB:
            b += [["s_lshl_b32 %s, %s, 8" % (s_t3, s_w), "v_and_b32 %s, 31, %s" % (T4, lane), "v_lshl_add_u32 %s, %s, 2, %s" % (T4, T4, s_t3)]]
            b += ["ds_write_b32 %s, %s offset:%d" % (T4, SL[tb][1], 2 * WST + tb * 128) for tb in range(2)]
        ge = put(276, b, 2)
        ad = []
        for e in range(3): ad += ["v_add_f32 %s, %s, %s" % (C0[e], C0[e], C1[e]), "v_add_f32 %s, %s, %s" % (VO4[e], VO4[e], AB[e])]
        for e in range(3): ad += ["v_add_f32 %s, %s, %s" % (C0[e], C0[e], VO4[e])]
        for e, pos in ((2, 0), (0, 2), (1, 4)):
            ad += ["v_cvt_pk_bf16_f32 %s, %s, %s" % (AB[pos], C0[e], C0[e]), "v_lshlrev_b32 %s, 16, %s" % (T4, AB[pos]),
                   "v_sub_f32 %s, %s, %s" % (T4, C0[e], T4), "v_cvt_pk_bf16_f32 %s, %s, 0" % (AB[pos + 1], T4)]
        ge = put(max(ge, 280), ad, 2); assert ge <= 316, ge
        wd = [wdload(k) for k in range(56)]; wo = [woload(k) for k in range(16)]
        nx = opt.get("wdn", [0, 4, 6, 6, 6, 6, 12, 16])
        assert sum(nx) == 56
        for k in range(-1, 7):
            lo = 0 if k < 0 else 40 * k + 32
            hi = 40 * (k + 1) + 31 if k < 6 else 318
            dm = dma(k + 3) if k + 3 < 8 else []
            ex = [wd.pop(0) for _ in range(nx[k + 1])]
            if k == 5: ex = gl + merge(ex, wo[:8])
            if k == 6: ex = merge(ex, wo[8:])
            if k == -1: ex = [["buffer_load_dword %s, off, %s, 0 sc1 ; @vm nonce" % (vn, sDbg)]] + ex
            if k == 0:
                SN = PL[24:28]
                ex = ex + [["v_mov_b32 %s, -1" % SN[e] for e in range(4)] +
                           ["s_lshr_b32 %s, %s, 15" % (s_t3, s_i[0]), "s_mul_i32 %s, %s, 144" % (s_t3, s_t3), "s_add_u32 %s, %s, %s" % (s_t3, s_t3, s_ct),
                            "s_lshl_b32 %s, %s, 10" % (s_t3, s_t3), "s_add_u32 %s, %s, %d" % (s_t3, s_t3, WS_AF),
                            "buffer_store_dwordx4 %s, %s, %s, %s offen %s" % (SN, vl16, sW, s_t3, SC),
                            "s_add_u32 %s, %s, %d" % (s_t3, s_t3, 144 * 1024),
                            "buffer_store_dwordx4 %s, %s, %s, %s offen %s" % (SN, vl16, sW, s_t3, SC)]]
            for (tw, kind) in opt.get("touch", []):
                if tw != k: continue
                TA, TD = PL[28], PL[29]
                h = ["s_lshr_b32 %s, s2, 3" % s_t3]
                if kind == "A":
                    h += ["s_lshl_b32 %s, %s, 13" % (s_t3, s_t3), "s_add_u32 %s, %s, %s" % (s_t3, s_t3, s_wd), "v_lshlrev_b32 %s, 7, %s" % (TA, lane),
                          "buffer_load_dword %s, %s, %s, %s offen" % (TD, TA, sD, s_t3)]
                elif kind == "B":
                    h += ["s_mul_i32 %s, %s, 6144" % (s_t3, s_t3), "s_add_u32 %s, %s, %s" % (s_t3, s_t3, s_wd), "s_add_u32 %s, %s, %d" % (s_t3, s_t3, 256 * 1024),
                          "v_min_u32 %s, 47, %s" % (TA, lane), "v_lshlrev_b32 %s, 7, %s" % (TA, TA),
                          "buffer_load_dword %s, %s, %s, %s offen" % (TD, TA, sD, s_t3)]
                elif kind == "C":
                    h += ["s_lshl_b32 %s, %s, 14" % (s_t3, s_t3), "s_lshl_b32 %s, %s, 2" % (s_cnt, s_w1024), "s_add_u32 %s, %s, %s" % (s_t3, s_t3, s_cnt),
                          "v_and_b32 %s, 31, %s" % (TA, lane), "v_lshlrev_b32 %s, 7, %s" % (TA, TA),
                          "buffer_load_dword %s, %s, %s, %s offen" % (TD, TA, sO, s_t3)]
                ex = [h] + ex
            items = merge(dm, ex) if dm and ex else dm + ex
            n = len(items)
            for q, it in enumerate(items):
                fill[lo + (q * (hi - lo)) // n].insert(0, it)
        for c in range(8):
            if c in (2, 4, 6) and not opt.get("tlp"): stamp(2 + c // 2)
            for sg in range(4):
                a("s_waitcnt lgkmcnt(0)")
                m = mfmas(sg & 1, typeB, c == 0 and sg == 0)
                rd = reads(c, sg + 1) if sg < 3 else (reads(c + 1, 0) if c < 7 else [])
                k = 0
                for i, x in enumerate(m):
                    a(x)
                    if sg == 3 and c < 7 and i == 1: a("@wait d%d\ns_barrier", c + 1)
                    if sg < 3 or i >= 1:
                        for _ in range(2):
                            if k < len(rd): a(rd[k]); k += 1
                    for gr in fill[c * 40 + sg * 10 + i]: a.ext(gr)
                assert k == len(rd)
        stamp(6)
        Aw = {0: AB[2:6], 1: AB[0:4], 2: AB[4:8], 3: AB[2:6], 4: AB[0:4]}
        useX = {0: 1, 1: 0, 2: 1, 3: 0, 4: 1}
        def corr(nb, tb):
            B = AB[6 + 6 * tb:12 + 6 * tb]; B = B[0:4] if useX[nb] else B[2:6]
            A = Aw[nb]
            if typeB and nb < 4: A, B = B, A
            return "v_mfma_f32_32x32x16_bf16 %s, %s, %s, %s" % (ACC(nb, tb), A, B, ACC(nb, tb))
        rstd = [SL[0][1], SL[1][1]]
        e0, e1, e2 = [xf[0][i] for i in range(3)]
        sc2 = [R("v", xf[0].b + 4, 2), R("v", xf[0].b + 6, 2)]
        order = [(4, 0), (4, 1), (0, 0), (2, 0), (0, 1), (2, 1), (1, 0), (3, 0), (1, 1), (3, 1)] if not typeB else \
                [(4, 0), (4, 1)] + [(nb, tb) for tb in range(2) for nb in range(4)]
        M = [corr(*o) for o in order]
        f = []
        f += [["s_lshl_b32 %s, %s, 3" % (s_t, s_rt), "s_lshl_b32 %s, %s, 1" % (s_t2, s_w), "s_add_u32 %s, %s, %s" % (s_i[0], s_t, s_t2),
               "s_lshr_b32 %s, %s, 4" % (s_t, s_ct), "s_lshl_b32 %s, %s, 21" % (s_t, s_t),
               "s_lshl_b32 %s, %s, 15" % (s_t2, s_i[0]), "s_add_u32 %s, %s, %s" % (s_t, s_t, s_t2),
               "s_and_b32 %s, %s, 15" % (s_t2, s_ct), "s_lshl_b32 %s, %s, 11" % (s_t2, s_t2), "s_add_u32 %s, %s, %s" % (s_i[1], s_t, s_t2),
               "s_add_u32 %s, %s, %d" % (s_i[2], s_i[1], 32768),
               "s_cmp_lt_u32 %s, 16" % s_ct, "s_cselect_b32 %s, %s, 1.0" % (s_t, fx(QSCALE))]]
        f += [["v_mul_f32 %s, %s, %s" % (sc2[tb][0], s_t, rstd[tb]), "v_mul_f32 %s, %s, %s" % (sc2[tb][1], s_t, rstd[tb])] for tb in range(2)]
        if not typeB:
            f += [["s_mul_i32 %s, %s, %d" % (s_i[3], s_i[0], 144 * 1024), "s_lshl_b32 %s, %s, 12" % (s_t2, s_ct), "s_add_u32 %s, %s, %s" % (s_i[3], s_i[3], s_t2),
                   "s_add_u32 %s, %s, %d" % (s_i[3], s_i[3], WS_AF + 32 * 1024), "s_add_u32 %s, %s, %d" % (s_i[4], s_i[3], 144 * 1024)]]
        else:
            RS = [wf[0][0:16], aG[0][0]]
            RS = [wf[0][0:16], R("v", aG[0][0].b, 16)]
            assert RS[1].b % 2 == 0
            f += [["v_bfe_u32 %s, %s, 4, 1" % (e1, lane), "v_lshlrev_b32 %s, 10, %s" % (e1, e1),
                   "v_lshrrev_b32 %s, 5, %s" % (e2, lane), "v_lshl_add_u32 %s, %s, 8, %s" % (e1, e2, e1),
                   "v_and_b32 %s, 15, %s" % (e0, lane), "v_lshl_add_u32 %s, %s, 4, %s" % (e1, e0, e1),
                   "s_lshl_b32 %s, %s, 8" % (s_t2, s_w), "v_lshl_add_u32 %s, %s, 4, %s" % (e2, e2, s_t2)] +
                  ["ds_read_b128 %s, %s offset:%d" % (RS[tb][g * 4:g * 4 + 4], e2, 2 * WST + tb * 128 + g * 32) for tb in range(2) for g in range(4)] +
                  ["s_lshl_b32 %s, %s, 15" % (s_i[3], s_i[0]), "s_sub_u32 %s, %s, 28" % (s_t2, s_ct), "s_lshl_b32 %s, %s, 13" % (s_t2, s_t2),
                   "s_add_u32 %s, %s, %s" % (s_i[3], s_i[3], s_t2), "s_add_u32 %s, %s, %d" % (s_i[3], s_i[3], WS_V),
                   "s_add_u32 %s, %s, %d" % (s_i[4], s_i[3], 32768), "s_add_u32 %s, %s, %d" % (s_i[5], s_i[3], 4096), "s_add_u32 %s, %s, %d" % (s_i[6], s_i[4], 4096)]]
        for i in range(4):
            a(M[i]); a.ext(f[i])
        def qk(tb):
            G = ACC(4, tb); g = []
            for i in range(0, 16, 2): g.append("v_pk_mul_f32 %s, %s, %s" % (G[i:i + 2], G[i:i + 2], sc2[tb]))
            for i in range(0, 16, 2): g.append("v_cvt_pk_bf16_f32 %s, %s, %s" % (G[i // 2], G[i], G[i + 1]))
            for hf in range(2): g.append("buffer_store_dwordx4 %s, %s, %s, %s offen offset:%d %s" % (G[hf * 4:hf * 4 + 4], vl16, sW, s_i[1 + tb], hf * 1024, SC))
            return g
        a.ext(interleave(M[4:], qk(0) + qk(1)))
        if not typeB:
            for nb in range(2):
                for tb in range(2):
                    G, U = ACC(nb, tb), ACC(nb + 2, tb)
                    for i in range(0, 16, 2): a("v_pk_mul_f32 %s, %s, %s", G[i:i + 2], G[i:i + 2], U[i:i + 2])
                    for i in range(0, 16, 2): a("v_cvt_pk_bf16_f32 %s, %s, %s", G[i // 2], G[i], G[i + 1])
                    for hf in range(2):
                        a("buffer_store_dwordx4 %s, %s, %s, %s offen offset:%d %s", G[hf * 4:hf * 4 + 4], vl16, sW, s_i[3 + tb], (2 * nb + hf) * 1024, SC)
            a("@save p2\ns_branch %s_p2", label)
        else:
            a("s_waitcnt lgkmcnt(0)")
            for tb in range(2):
                for nb in range(4):
                    G = ACC(nb, tb)
                    for i in range(0, 16, 2): a("v_pk_mul_f32 %s, %s, %s", G[i:i + 2], G[i:i + 2], RS[tb][i:i + 2])
                    for i in range(0, 16, 2): a("v_cvt_pk_bf16_f32 %s, %s, %s", G[i // 2], G[i], G[i + 1])
                    for hf in range(2):
                        a("buffer_store_dwordx4 %s, %s, %s, %s offen offset:%d %s", G[hf * 4:hf * 4 + 4], e1, sW, s_i[3 + tb + 2 * (nb >> 1)], (nb & 1) * 2048 + hf * 512, SC)
    import importlib
    importlib.import_module(opt.get("p2", "fz2")).phase2(a, ool, label, opt, locals())
    a("%s_end:\ns_endpgm", label)
    lines = []
    for l in a.L: lines += l.split("\n")
    lines = [l.replace(" ; @vm skip", " ; @novm") for l in lines if l != "@dropskip"]
    a0.L += resolve2(lines) + ool.L
    return dict(vgpr=512, accum=256, lds=163840)

def resolve2(lines):
    tmp = []
    for l in lines:
        tmp.append(l)
    out = []
    hidden = {}
    for k, l in enumerate(tmp):
        if "@novm" in l:
            hidden["@@%d" % k] = l.replace(" ; @novm", ""); out.append("@@%d" % k)
        else: out.append(l)
    res = resolve(out)
    return [hidden.get(l, l) for l in res]
```

```python
from asmlib import *
import struct, re
def f2u(f): return struct.unpack("<I", struct.pack("<f", f))[0]
def fx(f): return "0x%08x" % f2u(f)

WS_QK = 0
WS_V  = 4 << 20
WS_AF = 8 << 20
WS_CS = 18 << 20
WS_ST = WS_CS + (512 << 10)
WS_F1 = 19 << 20
WS_F2 = WS_F1 + 4096
WS_SIZE = 20 << 20
QSCALE = 0.25 * 1.4426950408889634
NEG = "0xf149f2ca"
RG = 39936; SCR = 4 * RG
def XS(st): return st * 8192
def GU(st): return 24576 + st * 4096
def QS(st): return 36864 + st * 1024
def AREA(st): return [XS(st) + k * 2048 for k in range(4)] + [GU(st) + k * 2048 for k in range(2)]
SLOT = AREA(2) + AREA(0) + AREA(2) + AREA(1)[:4] + AREA(0) + AREA(2) + AREA(1)[4:]
assert len(SLOT) == 36
SPIN = 1 << 14

def resolve(lines):
    out = []; ops = []; saved = {}
    for l in lines:
        s = l.strip()
        if s.startswith("@wait "):
            tags = s.split()[1:]
            idx = -1
            for i, t in enumerate(ops):
                if t in tags: idx = i
            if idx < 0: continue
            n = len(ops) - 1 - idx
            out.append("    s_waitcnt vmcnt(%d)" % min(n, 63))
            ops = ops[idx + 1:]
        elif s.startswith("@save "): saved[s.split()[1]] = list(ops)
        elif s.startswith("@restore "): ops = list(saved[s.split()[1]])
        elif s.startswith("@clear"): ops = []
        else:
            m = re.search(r";\s*@vm (\S+)", l)
            if m: ops.append(m.group(1)); l = l[:m.start()].rstrip()
            elif s.startswith(("buffer_", "global_")): ops.append("?")
            if s.startswith("s_waitcnt") and "vmcnt(0)" in s: ops = []
            out.append(l)
    return out

def flat2(l):
    o = []
    for x in l: o += x
    return o

def gen(a0, label, opt):
    a = Asm()
    P_POS = opt.get("pos", 1)
    SC = "sc1"
    ool = Asm()
    V = Alloc("v", 1, 96)
    acc = R("v", 96, 160)
    def ACC(nb, tb): return acc[(nb * 2 + tb) * 16:(nb * 2 + tb) * 16 + 16]
    lane = V(); vl16 = V(); voD = V()
    wf = [V(20, 4), R("a", 0, 20)]
    xf = [V(8, 4), V(8, 4)]
    VO4 = V(4, 4); voX = [VO4[0], VO4[1]]; voG = VO4[2]; voQ = VO4[3]
    aG = [[V(), V()] for _ in range(4)]
    aQ = [V() for _ in range(4)]
    aX = [V() for _ in range(4)]
    PL = V(36, 4)
    t0, t1, t2, t3, t4, t5 = [PL[30 + i] for i in range(6)]
    WD = [R("a", 20 + 8 * s, 8) for s in range(18)]
    sX, sG, sU, sQ, sW, sD, sO, sOut, sDbg = [R("s", 4 + 4 * i, 4) for i in range(9)]
    (s_w, s_rt, s_ct, s_stride, s_w2048, s_w1024, s_xb, s_t, s_t2, s_ones, s_nonce, s_rt2, s_ct2, s_st8, s_wd, s_wo) = [R("s", 40 + i) for i in range(16)]
    s_i = [R("s", 56 + i) for i in range(8)]
    s_cur, s_t3 = R("s", 64), R("s", 65)
    s_m = R("s", 66, 2); s_need = R("s", 68, 2); s_cnt = R("s", 70); s_done = R("s", 71)
    tl = Timeline(a, opt.get("tl"), 0, 72)
    def stamp(n, emit=True):
        if not tl.on: return None
        tl.n = n
        return tl.stamp(emit)
    a("%s:", label)
    stamp(0)
    a("s_cmp_ge_u32 s2, %d\ns_cbranch_scc1 %s_end", 0 if opt.get("empty") else 256, label)
    for srd, off in ((sX, 0), (sQ, 8), (sG, 32), (sU, 40), (sW, 72), (sDbg, 64), (sD, 48), (sO, 16), (sOut, 56)):
        a("s_load_dwordx2 %s, s[0:1], %d", srd[0:2], off)
    s_own = s_done; s_col = s_t3; s_x = s_need[0]; s_kr = s_need[1]
    a("v_lshrrev_b32 %s, 6, v0", t0)
    a("v_and_b32 %s, 63, v0", lane)
    a("s_and_b32 %s, s2, 7\ns_lshr_b32 %s, s2, 3", s_x, s_t2)
    a("v_readfirstlane_b32 %s, %s", s_w, t0)
    a("s_and_b32 %s, %s, 3\ns_lshr_b32 %s, %s, 2", s_ct, s_t2, s_ct2, s_t2)
    a("v_lshrrev_b32 %s, 3, %s", t0, lane)
    a("s_lshl2_add_u32 %s, %s, %s\ns_and_b32 %s, %s, 7", s_rt2, s_x, s_ct, s_rt, s_rt2)
    a("v_and_b32 %s, 7, %s", t1, lane)
    a("s_lshl1_add_u32 %s, %s, %s\ns_and_b32 %s, %s, 1\ns_add_u32 %s, %s, %s", s_own, s_ct, s_ct2, s_t, s_x, s_own, s_own, s_t)
    a("v_lshrrev_b32 %s, 4, %s", t2, lane)
    ROT = opt.get("rot", 1)
    if ROT == 0: a("s_mov_b32 %s, %s", s_own, s_rt)
    a("s_and_b32 %s, %s, 7", s_own, s_own)
    if ROT == 2:
        a("s_add_u32 %s, %s, 7\ns_and_b32 %s, %s, 7", s_cur, s_own, s_cur, s_cur)
    elif ROT == 0: a("s_cselect_b32 %s, 0, 1", s_cur)
    else: a("s_cselect_b32 %s, 0, 7", s_cur)
    a("v_xor_b32 %s, %s, %s", t3, t1, t2)
    a("s_mul_i32 %s, %s, %d", s_xb, s_w, RG)
    a("v_lshlrev_b32 %s, 4, %s", t3, t3)
    a("s_lshl_b32 %s, %s, 18\ns_lshl_b32 %s, %s, 16\ns_add_u32 %s, %s, %s", s_wo, s_rt, s_t2, s_w, s_i[0], s_wo, s_t2)
    a("v_lshl_add_u32 %s, %s, 10, %s", voX[0], t0, t3)
    a("s_lshl_b32 %s, %s, 7", s_t, s_cur)
    a("s_mov_b32 %s, %d\ns_mov_b32 %s, 0x00020000", sX[2], 0x200000, sX[3])
    a("v_add_u32 %s, %s, %s", voX[0], s_t, voX[0])
    a("s_mov_b32 m0, %s", s_xb)
    a("v_xor_b32 %s, 64, %s", voX[1], voX[0])
    if opt.get("tlp"): stamp(3)
    a("s_waitcnt lgkmcnt(0)")
    if opt.get("tlp"): stamp(4)
    su = []
    su += ["s_memrealtime %s" % s_m,
           "s_lshr_b32 %s, %s, 1" % (s_ct, s_x), "s_lshl3_add_u32 %s, %s, %s" % (s_ct, s_ct, s_ct2),
           "s_lshl_b32 %s, %s, 4" % (s_kr, s_w), "s_lshl_b32 %s, %s, 6" % (s_t, s_cur), "s_add_u32 %s, %s, %s" % (s_kr, s_kr, s_t),
           "s_lshl_b32 %s, %s, 7" % (s_col, s_ct),
           "s_lshl_b32 %s, %s, 8" % (s_t, s_ct), "s_sub_u32 %s, %s, %d" % (s_t, s_t, 28 * 256 - 2048),
           ["s_add_u32 %s, s16, 128" % s_cnt, "s_addc_u32 %s, s17, 0" % s_t2],
           "s_movk_i32 %s, 3584" % s_stride, "s_mov_b32 s14, %d" % (512 * 3584),
           ["s_cmp_ge_u32 %s, 28" % s_ct, "s_cselect_b32 %s, %s, %s" % (s_col, s_t, s_col), "s_cselect_b32 %s, 3072, %s" % (s_stride, s_stride),
            "s_cselect_b32 s10, %d, s14" % (512 * 3072), "s_cselect_b32 s14, %d, s14" % (512 * 3072 - 128),
            "s_cselect_b32 s8, s16, s8", "s_cselect_b32 s9, s17, s9", "s_cselect_b32 s12, %s, s12" % s_cnt, "s_cselect_b32 s13, %s, s13" % s_t2],
           "s_mov_b32 s11, 0x00020000", "s_mov_b32 s15, 0x00020000", "s_lshl_b32 %s, %s, 3" % (s_st8, s_stride),
           "v_and_b32 %s, 1, %s" % (t3, t2), "v_lshlrev_b32 %s, 2, %s" % (t3, t3), "v_xor_b32 %s, %s, %s" % (t3, t1, t3), "v_lshlrev_b32 %s, 4, %s" % (t3, t3),
           "v_add_u32 %s, %s, %s" % (t4, s_kr, t0), "v_mul_lo_u32 %s, %s, %s" % (t4, t4, s_stride),
           "v_add3_u32 %s, %s, %s, %s" % (voG, t4, t3, s_col)]
    su2 = ["s_mov_b32 %s, %d" % (sQ[2], 512 * 3072), "s_mov_b32 %s, 0x00020000" % sQ[3],
           "v_lshrrev_b32 %s, 2, %s" % (t4, lane), "v_add_u32 %s, %s, %s" % (t4, s_kr, t4), "v_mul_u32_u24 %s, 3072, %s" % (t4, t4),
           "v_and_b32 %s, 3, %s" % (t5, lane), "v_lshlrev_b32 %s, 4, %s" % (t5, t5), "s_lshl_b32 %s, %s, 6" % (s_t, s_ct),
           "v_add3_u32 %s, %s, %s, %s" % (voQ, t4, t5, s_t),
           "s_lshl_b32 %s, %s, 11" % (s_w2048, s_w), "s_lshl_b32 %s, %s, 10" % (s_w1024, s_w),
           "s_lshl_b32 %s, %s, 13" % (s_t2, s_ct), "s_add_u32 %s, %s, %s" % (s_wo, s_wo, s_t2), "s_add_u32 %s, %s, %s" % (s_wo, s_wo, s_w2048),
           "v_lshlrev_b32 %s, 4, %s" % (vl16, lane)]
    def adv(p):
        g = []
        if p == 1: g += ["s_sub_i32 %s, %s, %s" % (s_t2, s_own, s_cur), "s_mov_b32 %s, %s" % (s_cur, s_own)]
        elif ROT == 0:
            g += ["s_cmp_le_u32 %s, %d" % (s_rt, p - 1), "s_cselect_b32 %s, %d, %d" % (s_t, p, p - 1), "s_sub_i32 %s, %s, %s" % (s_t2, s_t, s_cur), "s_mov_b32 %s, %s" % (s_cur, s_t)]
        else:
            g += ["s_cmp_eq_u32 %s, 7" % s_cur, "s_cselect_b32 %s, %d, 1" % (s_t2, -7 if ROT == 2 else -6), "s_add_i32 %s, %s, %s" % (s_cur, s_cur, s_t2)]
        g += ["s_lshl_b32 %s, %s, 7" % (s_t, s_t2),
              "v_add_u32 %s, %s, %s" % (voX[0], s_t, voX[0]), "v_add_u32 %s, %s, %s" % (voX[1], s_t, voX[1]),
              "s_mul_i32 %s, %s, %d" % (s_t, s_t2, 64 * 3072), "s_lshl_b32 %s, %s, 3" % (s_t2, s_t2),
              "v_add_u32 %s, %s, %s" % (voQ, s_t, voQ),
              "s_mul_i32 %s, %s, %s" % (s_t2, s_t2, s_st8),
              "v_add_u32 %s, %s, %s" % (voG, s_t2, voG)]
        return g
    def dx(p, i): return ["s_add_u32 m0, %s, %d" % (s_xb, XS(p % 3) + i * 1024), "s_nop 0",
                          "buffer_load_dwordx4 %s, %s, %s offen lds ; @vm d%d" % (voX[i & 1], sX, s_i[i], p)]
    def dw(p):
        st = p % 3; tag = " ; @vm d%d" % p; g = []
        for j in range(2):
            so = "0" if j == 0 else str(s_st8)
            g.append(["s_add_u32 m0, %s, %d" % (s_xb, GU(st) + j * 1024), "s_nop 0",
                      "buffer_load_dwordx4 %s, %s, %s offen lds" % (voG, sG, so) + tag])
            g.append(["s_add_u32 m0, %s, %d" % (s_xb, GU(st) + 2048 + j * 1024), "s_nop 0",
                      "buffer_load_dwordx4 %s, %s, %s offen lds" % (voG, sU, so) + tag])
        g.append(["s_add_u32 m0, %s, %d" % (s_xb, QS(st)), "s_nop 0",
                  "buffer_load_dwordx4 %s, %s, 0 offen lds" % (voQ, sQ) + tag])
        return g
    def dma(p):
        return [adv(p)] + dw(p) + [dx(p, i) for i in range(8)]
    def flat(l):
        o = []
        for x in l: o += x if isinstance(x, list) else [x]
        return o
    ns = len(su)
    for i in range(8):
        d = dx(0, i)
        if i: a(d[0]); a("s_add_u32 %s, %s, %d", s_i[i], s_i[0], i * 8192)
        a(d[2])
        a.ext(flat(su[i * ns // 8:(i + 1) * ns // 8]))
    for k, d in enumerate(dw(0)):
        a(d[0]); a.ext(su2[3 * k:3 * k + 3]); a(d[2])
    if opt.get("tlp"): stamp(5)
    XR0, XR1 = PL[0:4], PL[4:8]
    a("buffer_load_dwordx4 %s, %s, %s, %s offen", XR0, vl16, sX, s_wo)
    a("buffer_load_dwordx4 %s, %s, %s, %s offen offset:1024", XR1, vl16, sX, s_wo)
    for srd, n in ((sW, WS_SIZE), (sDbg, 256), (sD, 1792 * 1024), (sO, 512 * 1024), (sOut, 0x200000)):
        a("s_mov_b32 %s, %d\ns_mov_b32 %s, 0x00020000", srd[2], n, srd[3])
    a("s_lshl_b32 %s, %s, 7", s_t, s_ct2)
    a("v_lshl_add_u32 %s, %s, 10, %s\nv_add_u32 %s, %s, %s", voD, t0, t3, voD, s_t, voD)
    a("s_mov_b32 %s, 0x3f803f80", s_ones)
    a("s_lshl_b32 %s, %s, 4\ns_add_u32 %s, %s, s2\ns_cmp_ge_u32 %s, 16\ns_cbranch_scc1 %s_nn", s_t, s_w, s_t, s_t, s_t, label)
    a("s_waitcnt lgkmcnt(0)")
    a("s_mul_i32 %s, %s, 0x9e3779b1\ns_xor_b32 %s, %s, %s\ns_or_b32 %s, %s, 1", s_t, s_m[1], s_t, s_t, s_m[0], s_t, s_t)
    a("v_mov_b32 %s, %s\nv_mov_b32 %s, 0", t0, s_t, t1)
    a("s_mov_b64 exec, 1")
    a("buffer_atomic_cmpswap %s, off, %s, 0 sc1 ; @vm skip", R("v", t0.b, 2), sDbg)
    a("s_mov_b64 exec, -1")
    a("%s_nn:", label)
    a.L.append("@dropskip")
    D1 = dma(1); npre = opt.get("d1pre", 0)
    if npre: a.ext(flat(D1[:npre + 1])); D1 = D1[npre + 1:]
    a("v_lshrrev_b32 %s, 5, %s", t0, lane)
    a("v_bfe_u32 %s, %s, 2, 2", t1, lane)
    a("v_bfe_u32 %s, %s, 4, 1", t2, lane)
    a("v_and_b32 %s, 3, %s", t3, lane)
    a("v_lshlrev_b32 %s, 3, %s\nv_lshl_add_u32 %s, %s, 5, %s", t3, t3, t3, t2, t3)
    a("v_lshlrev_b32 %s, 10, %s\nv_lshl_add_u32 %s, %s, 7, %s\nv_add_u32 %s, %s, %s", t4, t0, t4, t1, t4, t4, t4, t3)
    a("v_lshrrev_b32 %s, 1, %s\nv_lshl_add_u32 %s, %s, 6, %s", t5, t1, t4, t5, t4)
    a("v_lshlrev_b32 %s, 9, %s\nv_lshl_add_u32 %s, %s, 6, %s\nv_add_u32 %s, %s, %s", t5, t0, t5, t1, t5, t5, t5, t3)
    for sg in range(4):
        a("s_add_u32 %s, %s, %d\ns_and_b32 %s, %s, 3", s_t, s_w, sg, s_t, s_t)
        a("s_mul_i32 %s, %s, %d", s_t2, s_t, RG)
        a("v_add_u32 %s, %s, %s", aG[sg][0], s_t2, t4)
        a("v_xor_b32 %s, 64, %s", aG[sg][1], aG[sg][0])
        a("v_add_u32 %s, %s, %s", aQ[sg], s_t2, t5)
    a("v_and_b32 %s, 31, %s", t1, lane)
    a("v_bfe_u32 %s, %s, 1, 3", t2, lane)
    a("v_lshlrev_b32 %s, 7, %s\nv_add_u32 %s, %s, %s", t1, t1, t1, s_xb, t1)
    for sg in range(4):
        a("s_add_u32 %s, %s, %d\ns_and_b32 %s, %s, 3\ns_lshl_b32 %s, %s, 1", s_t, s_w, sg, s_t, s_t, s_t, s_t)
        a("v_add_u32 %s, %s, %s\nv_xor_b32 %s, %s, %s", t3, s_t, t0, t3, t3, t2)
        a("v_lshl_add_u32 %s, %s, 4, %s", aX[sg], t3, t1)
    ss = [PL[8 + i] for i in range(4)]
    SG = PL[12:16]; cs = [PL[16 + i] for i in range(5)]; CQ = PL[16:20]; vn = PL[21]
    for r in ss + cs: a("v_mov_b32 %s, 0", r)
    a("s_mul_i32 %s, %s, %d", s_wd, s_w, 448 * 1024)

    def reads(c, sg):
        st = c % 3; p = sg & 1
        g = []
        for tb in range(2):
            g.append("ds_read_b128 %s, %s offset:%d" % (xf[p][tb * 4:tb * 4 + 4], aX[sg], st * 8192 + tb * 4096))
        for nb in range(5):
            for j in range(2):
                if nb < 4: ad, off = aG[sg][nb & 1], GU(st) + (nb >> 1) * 2048 + j * 512
                else: ad, off = aQ[sg], QS(st) + j * 256
                g.append("ds_read_b64_tr_b16 %s, %s offset:%d" % (wf[p][nb * 4 + 2 * j:nb * 4 + 2 * j + 2], ad, off))
        return g
    def mfmas(p, typeB, first):
        g = []
        for nb in range(5):
            for tb in range(2):
                A, B = wf[p][nb * 4:nb * 4 + 4], xf[p][tb * 4:tb * 4 + 4]
                if typeB and nb < 4: A, B = B, A
                g.append("v_mfma_f32_32x32x16_bf16 %s, %s, %s, %s" % (ACC(nb, tb), A, B, "0" if first else str(ACC(nb, tb))))
        return g
    GB = [R("s", 12 + g) for g in range(7)]
    aW = [R("v", 0), PL[2]]
    def w2dma(s, j):
        if s < 28: srd, base, off = sD, GB[s >> 2], ((s & 3) * 16 + 8 * j) * 1024
        else: srd, base, off = sO, s_wo, ((s - 28) * 16 + 8 * j) * 1024
        return ["s_add_u32 m0, %s, %d" % (s_xb, SLOT[s] + j * 1024), "s_add_u32 %s, %s, %d" % (s_t3, base, off),
                "buffer_load_dwordx4 %s, %s, %s offen lds ; @vm w%d" % (voD, srd, s_t3, s)]
    def w2d(lo, hi): return [w2dma(s, j) for s in range(lo, hi) for j in range(2)]
    def trd(s, aw=None):
        aw = aw or aW; dst = WD[s % 18]
        g = ["ds_read_b64_tr_b16 %s, %s offset:%d" % (dst[4 * nb + 2 * j:4 * nb + 2 * j + 2], aw[nb], SLOT[s] + j * 1024) for nb in range(2) for j in range(2)]
        g[0] = ["@wait w%d" % s, g[0]]
        return g

    if opt.get("tlp") != 2: stamp(1)
    a("@wait d0\ns_barrier")
    stamp(2)
    a.ext(reads(0, 0))
    a("@save br")
    a("s_cmp_ge_u32 %s, 28\ns_cbranch_scc1 %s_B", s_ct, label)
    SL = [PL[0:4], PL[4:8]]; C0, C1 = PL[8:12], PL[12:16]
    AB = PL[16:34]; T4, T5 = PL[34], PL[35]
    for typeB in (False, True):
        tg = "AB"[typeB]
        if typeB: a("%s_B:\n@restore br", label)
        fill = [[] for _ in range(320)]
        def put(g0, groups, per=2):
            for k, gr in enumerate(groups):
                fill[g0 + k // per].append(gr if isinstance(gr, list) else [gr])
            return g0 + (len(groups) + per - 1) // per
        st = ["@wait st"]
        for i in range(4):
            st += ["v_dot2c_f32_bf16 %s, %s, %s" % (ss[0], s_ones, XR0[i]), "v_dot2c_f32_bf16 %s, %s, %s" % (ss[1], XR0[i], XR0[i]),
                   "v_dot2c_f32_bf16 %s, %s, %s" % (ss[2], s_ones, XR1[i]), "v_dot2c_f32_bf16 %s, %s, %s" % (ss[3], XR1[i], XR1[i])]
        st += [["s_nop 2", "v_permlane32_swap_b32 %s, %s" % (ss[0], ss[2])], "v_permlane32_swap_b32 %s, %s" % (ss[1], ss[3]),
               "v_add_f32 %s, %s, %s" % (ss[0], ss[0], ss[2]), "v_add_f32 %s, %s, %s" % (ss[1], ss[1], ss[3]),
               ["s_nop 1", "v_permlane16_swap_b32 %s, %s" % (ss[0], ss[1])],
               "v_add_f32 %s, %s, %s" % (ss[0], ss[0], ss[1])]
        for sh in (8, 4, 2, 1):
            st.append(["s_nop 1", "v_add_f32_dpp %s, %s, %s row_ror:%d row_mask:0xf bank_mask:0xf" % (ss[0], ss[0], ss[0], sh)])
        st += ["v_mov_b32 %s, %s" % (ss[1], ss[0]), ["s_nop 1", "v_permlane16_swap_b32 %s, %s" % (ss[0], ss[1])],
               "v_mul_f32 %s, %s, %s" % (SG[0], fx(-1.0 / 512), ss[0]),
               "v_mul_f32 %s, %s, %s" % (ss[1], fx(1.0 / 512), ss[1]),
               "v_fma_f32 %s, -%s, %s, %s" % (ss[1], SG[0], SG[0], ss[1]),
               "v_max_f32 %s, 0, %s" % (ss[1], ss[1]),
               "v_add_f32 %s, %s, %s" % (SG[2], fx(1e-5), ss[1]),
               "v_rsq_f32 %s, %s" % (SG[1], SG[2])]
        put(opt.get("st0", 8), st, 2)
        g0 = 40 * P_POS
        put(g0, ["v_dot2c_f32_bf16 %s, %s, %s" % (cs[nb], s_ones, wf[0][nb * 4 + i]) for i in range(4) for nb in range(5)], 2)
        put(g0 + 12, ["v_mov_b32 %s, %s" % (T4, cs[4]), "v_permlane32_swap_b32 %s, %s" % (cs[0], cs[1]), "v_permlane32_swap_b32 %s, %s" % (cs[2], cs[3]),
                      "v_permlane32_swap_b32 %s, %s" % (cs[4], T4),
                      "v_add_f32 %s, %s, %s" % (CQ[0], cs[0], cs[1]), "v_add_f32 %s, %s, %s" % (CQ[1], cs[2], cs[3]), "v_add_f32 %s, %s, %s" % (CQ[2], cs[4], T4),
                      ["s_add_u32 %s, %s, %d" % (s_t3, s_w1024, SCR), "v_add_u32 %s, %s, %s" % (T4, s_t3, vl16)],
                      "v_add_u32 %s, %d, %s" % (T5, SCR, vl16),
                      "ds_write_b128 %s, %s" % (T4, CQ)], 2)
        g0 = 40 * max(1, P_POS) + 32
        LL = [PL[0:4], PL[4:8], PL[8:12], CQ]
        g1 = put(g0, [["@wait nonce", "v_readfirstlane_b32 %s, %s" % (s_nonce, vn)],
                 ["s_cmp_eq_u32 %s, 0" % s_nonce, "s_cbranch_scc1 %s_rn%s" % (label, tg), "%s_rnr%s:" % (label, tg)],
                 ["v_lshrrev_b32 %s, 5, %s" % (T4, lane), "v_lshlrev_b32 %s, 4, %s" % (T4, T4)],
                 ["v_mov_b32 %s, %s" % (SG[3], s_nonce)],
                 ["s_lshr_b32 %s, %s, 6" % (s_t3, s_wo), "s_add_u32 %s, %s, %d" % (s_t3, s_t3, WS_ST), "s_mov_b32 exec_lo, 1", "s_mov_b32 exec_hi, 1", "buffer_store_dwordx4 %s, %s, %s, %s offen %s" % (SG, T4, sW, s_t3, SC), "s_mov_b64 exec, -1"]] , 1)
        put(g0 + 6, ["ds_read_b128 %s, %s offset:%d" % (LL[k], T5, k * 1024) for k in range(4)], 2)
        ool("%s_rn%s:", label, tg)
        ool("s_mov_b32 %s, %d", s_cnt, SPIN)
        ool("%s_rn%s_l:", label, tg)
        ool("buffer_load_dword %s, off, %s, 0 sc1\ns_waitcnt vmcnt(0)\nv_readfirstlane_b32 %s, %s", vn, sDbg, s_nonce, vn)
        ool("s_cmp_lg_u32 %s, 0\ns_cbranch_scc1 %s_rnr%s", s_nonce, label, tg)
        ool("s_sleep 2\ns_sub_u32 %s, %s, 1\ns_cmp_lg_u32 %s, 0\ns_cbranch_scc1 %s_rn%s_l\ns_branch %s_rnr%s", s_cnt, s_cnt, s_cnt, label, tg, label, tg)
        ad = []
        for e in range(3): ad += ["v_add_f32 %s, %s, %s" % (LL[0][e], LL[0][e], LL[1][e]), "v_add_f32 %s, %s, %s" % (CQ[e], CQ[e], LL[2][e])]
        for e in range(3): ad += ["v_add_f32 %s, %s, %s" % (CQ[e], CQ[e], LL[0][e])]
        ad += [["v_mov_b32 %s, %s" % (CQ[3], s_nonce), "s_lshl_b32 %s, %s, 3" % (s_t3, s_ct), "s_add_u32 %s, %s, %s" % (s_t3, s_t3, s_rt),
                "s_lshl_b32 %s, %s, 10" % (s_t3, s_t3), "s_add_u32 %s, %s, %d" % (s_t3, s_t3, WS_CS),
                "s_lshl_b32 %s, %s, 4" % (s_cnt, s_w), "s_lshl_b64 exec, 0xffff, %s" % s_cnt,
                "buffer_store_dwordx4 %s, %s, %s, %s offen %s" % (CQ, vl16, sW, s_t3, SC), "s_mov_b64 exec, -1",
                "s_lshl_b32 %s, %s, 17" % (s_wo, s_w)]]
        put(g0 + 8, ad, 2)
        def gloads():
            return [["v_and_b32 %s, 31, %s" % (T4, lane), "v_lshlrev_b32 %s, 4, %s" % (T4, T4),
                     "s_lshr_b32 %s, %s, 6" % (s_t3, s_i[0]), "s_add_u32 %s, %s, %d" % (s_t3, s_t3, WS_ST),
                     "buffer_load_dwordx4 %s, %s, %s, %s offen %s ; @vm g" % (SL[0], T4, sW, s_t3, SC)],
                    ["buffer_load_dwordx4 %s, %s, %s, %s offen offset:512 %s ; @vm g" % (SL[1], T4, sW, s_t3, SC)],
                    ["s_lshl_b32 %s, %s, 13" % (s_t3, s_ct), "s_add_u32 %s, %s, %s" % (s_t3, s_t3, s_w2048), "s_add_u32 %s, %s, %d" % (s_t3, s_t3, WS_CS),
                     "buffer_load_dwordx4 %s, %s, %s, %s offen %s ; @vm g" % (C0, vl16, sW, s_t3, SC),
                     "buffer_load_dwordx4 %s, %s, %s, %s offen offset:1024 %s ; @vm g" % (C1, vl16, sW, s_t3, SC)]]
        gl = gloads(); gl = [gl[0] + gl[1], gl[2]]
        def gcheck():
            return ["v_xor_b32 %s, %s, %s" % (SL[0][3], s_nonce, SL[0][3]), "v_xor_b32 %s, %s, %s" % (SL[1][3], s_nonce, SL[1][3]),
                    "v_xor_b32 %s, %s, %s" % (C0[3], s_nonce, C0[3]), "v_xor_b32 %s, %s, %s" % (C1[3], s_nonce, C1[3]),
                    "v_or3_b32 %s, %s, %s, %s" % (C0[3], C0[3], C1[3], SL[0][3]), "v_or_b32 %s, %s, %s" % (C0[3], C0[3], SL[1][3]),
                    "v_cmp_ne_u32 %s, 0, %s" % (s_m, C0[3])]
        GC = opt.get("gchk", 260)
        c1 = [["@wait g"] + gcheck()[:2]] + gcheck()[2:] + [
              ["s_cmp_lg_u64 %s, 0" % s_m, "s_cbranch_scc1 %s_rg%s" % (label, tg), "%s_rgr%s:" % (label, tg)]]
        c1 += ["v_add_f32 %s, %s, %s" % (C0[e], C0[e], C1[e]) for e in range(3)]
        c1 += [["s_add_u32 %s, %s, %d" % (s_t3, s_w1024, SCR), "v_add_u32 %s, %s, %s" % (T4, s_t3, vl16)], "ds_write_b128 %s, %s" % (T4, C0)]
        ge = put(GC, c1, 2); assert ge <= 270
        ool("%s_rg%s:", label, tg)
        ool("s_mov_b32 %s, %d", s_cnt, SPIN)
        ool("%s_rg%s_l:", label, tg)
        ool("s_sleep 2")
        for g in gloads(): ool.ext([re.sub(r" ; @vm.*", "", x) for x in g])
        ool("s_waitcnt vmcnt(0)"); ool.ext(gcheck())
        ool("s_cmp_eq_u64 %s, 0\ns_cbranch_scc1 %s_rgr%s", s_m, label, tg)
        ool("s_sub_u32 %s, %s, 1\ns_cmp_lg_u32 %s, 0\ns_cbranch_scc1 %s_rg%s_l\ns_branch %s_rgr%s", s_cnt, s_cnt, s_cnt, label, tg, label, tg)
        L2 = [C0, C1, AB[0:4], VO4]
        put(272, ["ds_read_b128 %s, %s offset:%d" % (L2[k], T5, k * 1024) for k in range(4)], 1)
        b = ["s_mov_b32 %s, 0" % s_m[0], "s_mov_b32 %s, -1" % s_m[1]]
        for tb in range(2):
            B = AB[6 + 6 * tb:12 + 6 * tb]; mean = SL[tb][0]
            b += ["v_cvt_pk_bf16_f32 %s, %s, 0" % (B[1], mean), "v_lshlrev_b32 %s, 16, %s" % (T4, B[1]), "v_sub_f32 %s, %s, %s" % (T4, mean, T4),
                  "v_cvt_pk_bf16_f32 %s, %s, %s" % (B[0], mean, T4),
                  "v_cndmask_b32 %s, 0, %s, %s" % (B[4], B[0], s_m), "v_cndmask_b32 %s, 0, %s, %s" % (B[5], B[1], s_m),
                  "v_cndmask_b32 %s, %s, 0, %s" % (B[0], B[0], s_m), "v_cndmask_b32 %s, %s, 0, %s" % (B[1], B[1], s_m),
                  "v_mov_b32 %s, 0" % B[2], "v_mov_b32 %s, 0" % B[3]]
        if typeB:
            b += [["v_and_b32 %s, 31, %s" % (T4, lane), "v_lshl_add_u32 %s, %s, 2, %s" % (T4, T4, s_xb)]]
            b += ["ds_write_b32 %s, %s offset:%d" % (T4, SL[tb][1], QS(2) + tb * 128) for tb in range(2)]
        ge = put(276, b, 2)
        ad = []
        for e in range(3): ad += ["v_add_f32 %s, %s, %s" % (C0[e], C0[e], C1[e]), "v_add_f32 %s, %s, %s" % (VO4[e], VO4[e], AB[e])]
        for e in range(3): ad += ["v_add_f32 %s, %s, %s" % (C0[e], C0[e], VO4[e])]
        for e, pos in ((2, 0), (0, 2), (1, 4)):
            ad += ["v_cvt_pk_bf16_f32 %s, %s, %s" % (AB[pos], C0[e], C0[e]), "v_lshlrev_b32 %s, 16, %s" % (T4, AB[pos]),
                   "v_sub_f32 %s, %s, %s" % (T4, C0[e], T4), "v_cvt_pk_bf16_f32 %s, %s, 0" % (AB[pos + 1], T4)]
        ge = put(max(ge, 280), ad, 2); assert ge <= 316, ge
        def spread(items, lo, hi):
            n = len(items)
            for q in range(n - 1, -1, -1):
                it = items[q]
                fill[lo + (q * (hi - lo)) // n].insert(0, it if isinstance(it, list) else [it])
        d2lo = opt.get("d2lo", 18)
        spread(dma(2), d2lo, 31); spread(D1, 0, opt.get("d1hi", 14))
        gb = [["s_cmp_eq_u32 %s, 7" % s_ct2, "s_cselect_b32 %s, 0, %s" % (s_t3, s_ct2 if opt.get("hrot", 1) else 0), "s_lshl_b32 %s, %s, 16" % (s_t3, s_t3),
               "s_add_u32 %s, %s, %s" % (GB[0], s_wd, s_t3), "s_add_u32 s19, %s, %d" % (s_wd, 7 << 16)]]
        for g in range(1, 7):
            gb.append(["s_add_u32 %s, %s, %d" % (GB[g], GB[g - 1], 1 << 16), "s_cmp_eq_u32 %s, s19" % GB[g], "s_cselect_b32 %s, %s, %s" % (GB[g], s_wd, GB[g])])
        put(224, gb, 1)
        v0 = aW[0]
        put(200, ["v_lshrrev_b32 %s, 5, %s" % (v0, lane), "v_bfe_u32 %s, %s, 2, 2" % (T4, lane), "v_lshl_add_u32 %s, %s, 2, %s" % (v0, v0, T4), "v_lshlrev_b32 %s, 7, %s" % (v0, v0),
                  "v_lshrrev_b32 %s, 1, %s" % (T4, T4), "v_lshl_add_u32 %s, %s, 6, %s" % (v0, T4, v0),
                  "v_bfe_u32 %s, %s, 4, 1" % (T4, lane), "v_lshl_add_u32 %s, %s, 5, %s" % (v0, T4, v0),
                  "v_and_b32 %s, 1, %s" % (T4, lane), "v_lshl_add_u32 %s, %s, 4, %s" % (v0, T4, v0),
                  "v_bfe_u32 %s, %s, 1, 1" % (T4, lane), "v_lshl_add_u32 %s, %s, 3, %s" % (v0, T4, v0),
                  ["s_lshr_b32 %s, %s, 1" % (s_t3, s_w), "s_lshl_b32 %s, %s, 6" % (s_t3, s_t3), "v_xor_b32 %s, %s, %s" % (v0, s_t3, v0)],
                  "v_add_u32 %s, %s, %s" % (v0, s_xb, v0)], 1)
        put(271, ["v_xor_b32 %s, 64, %s" % (aW[1], v0)], 1)
        spread(gl + w2d(0, 6), 232, opt.get("w5hi", 262))
        spread(w2d(6, 12), 272, 290)
        tro = opt.get("tro", 2)
        put(280 + tro, flat2([trd(s) for s in range(0, 3)]), 2); put(290 + tro, flat2([trd(s) for s in range(3, 6)]), 2)
        spread(w2d(12, 15), 290, 300); spread(w2d(15, 18), 300, 318)
        put(300 + tro, flat2([trd(s) for s in range(6, 9)]), 2); put(310, flat2([trd(s) for s in range(9, 12)]), 2)
        for k in range(0, 5):
            lo = 40 * k + 32; hi = 40 * (k + 1) + 31 if k < 4 else 224
            dm = dma(k + 3); ex = []
            if k == 0: ex = [["buffer_load_dword %s, off, %s, 0 sc1 ; @vm nonce" % (vn, sDbg)]]
            if k == 0:
                SN = PL[24:28]
                ex = ex + [["v_mov_b32 %s, -1" % SN[e] for e in range(4)] +
                           ["s_lshr_b32 %s, %s, 15" % (s_t3, s_i[0]), "s_mul_i32 %s, %s, 144" % (s_t3, s_t3), "s_and_b32 %s, %s, 15" % (s_cnt, s_ct), "s_lshl1_add_u32 %s, %s, %s" % (s_t3, s_cnt, s_t3),
                            "s_lshr_b32 %s, %s, 4" % (s_cnt, s_ct), "s_add_u32 %s, %s, %s" % (s_t3, s_t3, s_cnt),
                            "s_lshl_b32 %s, %s, 10" % (s_t3, s_t3), "s_add_u32 %s, %s, %d" % (s_t3, s_t3, WS_AF),
                            "buffer_store_dwordx4 %s, %s, %s, %s offen %s" % (SN, vl16, sW, s_t3, SC),
                            "s_add_u32 %s, %s, %d" % (s_t3, s_t3, 144 * 1024),
                            "buffer_store_dwordx4 %s, %s, %s, %s offen %s" % (SN, vl16, sW, s_t3, SC)]]
            for (tw, kind) in opt.get("touch", [[1, "A"], [2, "B"], [3, "C"]]):
                if tw != k: continue
                TA, TD = PL[28], PL[29]
                h = ["s_lshr_b32 %s, s2, 3" % s_t3]
                if kind == "A":
                    h += ["s_lshl_b32 %s, %s, 13" % (s_t3, s_t3), "s_add_u32 %s, %s, %s" % (s_t3, s_t3, s_wd), "v_lshlrev_b32 %s, 7, %s" % (TA, lane),
                          "buffer_load_dword %s, %s, %s, %s offen" % (TD, TA, sD, s_t3)]
                elif kind == "B":
                    h += ["s_mul_i32 %s, %s, 6144" % (s_t3, s_t3), "s_add_u32 %s, %s, %s" % (s_t3, s_t3, s_wd), "s_add_u32 %s, %s, %d" % (s_t3, s_t3, 256 * 1024),
                          "v_min_u32 %s, 47, %s" % (TA, lane), "v_lshlrev_b32 %s, 7, %s" % (TA, TA),
                          "buffer_load_dword %s, %s, %s, %s offen" % (TD, TA, sD, s_t3)]
                elif kind == "C":
                    h += ["s_lshl_b32 %s, %s, 14" % (s_t3, s_t3), "s_lshl_b32 %s, %s, 2" % (s_cnt, s_w1024), "s_add_u32 %s, %s, %s" % (s_t3, s_t3, s_cnt),
                          "v_and_b32 %s, 31, %s" % (TA, lane), "v_lshlrev_b32 %s, 7, %s" % (TA, TA),
                          "buffer_load_dword %s, %s, %s, %s offen" % (TD, TA, sO, s_t3)]
                ex = [h] + ex
            items = merge(dm, ex) if dm and ex else dm + ex
            spread(items, lo, hi)
        for c in range(8):
            if c in (2, 4, 6) and not opt.get("tlp"): stamp(2 + c // 2)
            for sg in range(4):
                a("s_waitcnt lgkmcnt(0)")
                m = mfmas(sg & 1, typeB, c == 0 and sg == 0)
                rd = reads(c, sg + 1) if sg < 3 else (reads(c + 1, 0) if c < 7 else [])
                k = 0
                for i, x in enumerate(m):
                    a(x)
                    if sg == 3 and c < 7 and i == 1: a("@wait d%d\ns_barrier", c + 1)
                    if sg < 3 or i >= 1:
                        for _ in range(2):
                            if k < len(rd): a(rd[k]); k += 1
                    for gr in fill[c * 40 + sg * 10 + i]: a.ext(gr)
                assert k == len(rd)
        stamp(6)
        Aw = {0: AB[2:6], 1: AB[0:4], 2: AB[4:8], 3: AB[2:6], 4: AB[0:4]}
        useX = {0: 1, 1: 0, 2: 1, 3: 0, 4: 1}
        def corr(nb, tb):
            B = AB[6 + 6 * tb:12 + 6 * tb]; B = B[0:4] if useX[nb] else B[2:6]
            A = Aw[nb]
            if typeB and nb < 4: A, B = B, A
            return "v_mfma_f32_32x32x16_bf16 %s, %s, %s, %s" % (ACC(nb, tb), A, B, ACC(nb, tb))
        rstd = [SL[0][1], SL[1][1]]
        e0, e1, e2 = [xf[0][i] for i in range(3)]
        sc2 = [R("v", xf[0].b + 4, 2), R("v", xf[0].b + 6, 2)]
        order = [(4, 0), (4, 1), (0, 0), (2, 0), (0, 1), (2, 1), (1, 0), (3, 0), (1, 1), (3, 1)] if not typeB else \
                [(4, 0), (4, 1)] + [(nb, tb) for tb in range(2) for nb in range(4)]
        M = [corr(*o) for o in order]
        f = []
        f += [["s_lshl_b32 %s, %s, 3" % (s_t, s_rt), "s_lshl_b32 %s, %s, 1" % (s_t2, s_w), "s_add_u32 %s, %s, %s" % (s_i[0], s_t, s_t2),
               "s_lshr_b32 %s, %s, 4" % (s_t, s_ct), "s_lshl_b32 %s, %s, 21" % (s_t, s_t),
               "s_lshl_b32 %s, %s, 15" % (s_t2, s_i[0]), "s_add_u32 %s, %s, %s" % (s_t, s_t, s_t2),
               "s_and_b32 %s, %s, 15" % (s_t2, s_ct), "s_lshl_b32 %s, %s, 11" % (s_t2, s_t2), "s_add_u32 %s, %s, %s" % (s_i[1], s_t, s_t2),
               "s_add_u32 %s, %s, %d" % (s_i[2], s_i[1], 32768),
               "s_cmp_lt_u32 %s, 16" % s_ct, "s_cselect_b32 %s, %s, 1.0" % (s_t, fx(QSCALE))]]
        f += [["v_mul_f32 %s, %s, %s" % (sc2[tb][0], s_t, rstd[tb]), "v_mul_f32 %s, %s, %s" % (sc2[tb][1], s_t, rstd[tb])] for tb in range(2)]
        if not typeB:
            f += [["s_mul_i32 %s, %s, %d" % (s_i[3], s_i[0], 144 * 1024), "s_lshl_b32 %s, %s, 12" % (s_t2, s_ct), "s_add_u32 %s, %s, %s" % (s_i[3], s_i[3], s_t2),
                   "s_add_u32 %s, %s, %d" % (s_i[3], s_i[3], WS_AF + 32 * 1024), "s_add_u32 %s, %s, %d" % (s_i[4], s_i[3], 144 * 1024)]]
        else:
            RS = [wf[0][0:16], aG[0][0]]
            RS = [wf[0][0:16], R("v", aG[0][0].b, 16)]
            assert RS[1].b % 2 == 0
            f += [["v_bfe_u32 %s, %s, 4, 1" % (e1, lane), "v_lshlrev_b32 %s, 10, %s" % (e1, e1),
                   "v_lshrrev_b32 %s, 5, %s" % (e2, lane), "v_lshl_add_u32 %s, %s, 8, %s" % (e1, e2, e1),
                   "v_and_b32 %s, 15, %s" % (e0, lane), "v_lshl_add_u32 %s, %s, 4, %s" % (e1, e0, e1),
                   "v_lshl_add_u32 %s, %s, 4, %s" % (e2, e2, s_xb)] +
                  ["ds_read_b128 %s, %s offset:%d" % (RS[tb][g * 4:g * 4 + 4], e2, QS(2) + tb * 128 + g * 32) for tb in range(2) for g in range(4)] +
                  ["s_lshl_b32 %s, %s, 15" % (s_i[3], s_i[0]), "s_sub_u32 %s, %s, 28" % (s_t2, s_ct), "s_lshl_b32 %s, %s, 13" % (s_t2, s_t2),
                   "s_add_u32 %s, %s, %s" % (s_i[3], s_i[3], s_t2), "s_add_u32 %s, %s, %d" % (s_i[3], s_i[3], WS_V),
                   "s_add_u32 %s, %s, %d" % (s_i[4], s_i[3], 32768), "s_add_u32 %s, %s, %d" % (s_i[5], s_i[3], 4096), "s_add_u32 %s, %s, %d" % (s_i[6], s_i[4], 4096)]]
        for i in range(4):
            a(M[i]); a.ext(f[i])
        def qk(tb):
            G = ACC(4, tb); g = []
            for i in range(0, 16, 2): g.append("v_pk_mul_f32 %s, %s, %s" % (G[i:i + 2], G[i:i + 2], sc2[tb]))
            for i in range(0, 16, 2): g.append("v_cvt_pk_bf16_f32 %s, %s, %s" % (G[i // 2], G[i], G[i + 1]))
            for hf in range(2): g.append("buffer_store_dwordx4 %s, %s, %s, %s offen offset:%d %s" % (G[hf * 4:hf * 4 + 4], vl16, sW, s_i[1 + tb], hf * 1024, SC + " ; @vm es"))
            return g
        a.ext(interleave(M[4:], qk(0) + qk(1)))
        if not typeB:
            for nb in range(2):
                for tb in range(2):
                    G, U = ACC(nb, tb), ACC(nb + 2, tb)
                    for i in range(0, 16, 2): a("v_pk_mul_f32 %s, %s, %s", G[i:i + 2], G[i:i + 2], U[i:i + 2])
                    for i in range(0, 16, 2): a("v_cvt_pk_bf16_f32 %s, %s, %s", G[i // 2], G[i], G[i + 1])
                    for hf in range(2):
                        a("buffer_store_dwordx4 %s, %s, %s, %s offen offset:%d %s", G[hf * 4:hf * 4 + 4], vl16, sW, s_i[3 + tb], (2 * nb + hf) * 1024, SC + " ; @vm es")
            a("@save p2\ns_branch %s_p2", label)
        else:
            a("s_waitcnt lgkmcnt(0)")
            for tb in range(2):
                for nb in range(4):
                    G = ACC(nb, tb)
                    for i in range(0, 16, 2): a("v_pk_mul_f32 %s, %s, %s", G[i:i + 2], G[i:i + 2], RS[tb][i:i + 2])
                    for i in range(0, 16, 2): a("v_cvt_pk_bf16_f32 %s, %s, %s", G[i // 2], G[i], G[i + 1])
                    for hf in range(2):
                        a("buffer_store_dwordx4 %s, %s, %s, %s offen offset:%d %s", G[hf * 4:hf * 4 + 4], e1, sW, s_i[3 + tb + 2 * (nb >> 1)], (nb & 1) * 2048 + hf * 512, SC + " ; @vm es")
    import importlib
    importlib.import_module(opt.get("p2", "g2")).phase2(a, ool, label, opt, locals())
    a("%s_end:\ns_endpgm", label)
    lines = []
    for l in a.L: lines += l.split("\n")
    lines = [l.replace(" ; @vm skip", " ; @novm") for l in lines if l != "@dropskip"]
    a0.L += resolve2(lines) + ool.L
    return dict(vgpr=512, accum=256, lds=163840)

def resolve2(lines):
    tmp = []
    for l in lines:
        tmp.append(l)
    out = []
    hidden = {}
    for k, l in enumerate(tmp):
        if "@novm" in l:
            hidden["@@%d" % k] = l.replace(" ; @novm", ""); out.append("@@%d" % k)
        else: out.append(l)
    res = resolve(out)
    return [hidden.get(l, l) for l in res]
```

```python
from asmlib import *
import struct, re
def f2u(f): return struct.unpack("<I", struct.pack("<f", f))[0]
def fx(f): return "0x%08x" % f2u(f)

WS_QK = 0
WS_V  = 4 << 20
WS_AF = 8 << 20
WS_CS = 18 << 20
WS_ST = WS_CS + (512 << 10)
WS_F1 = 19 << 20
WS_F2 = WS_F1 + 4096
WS_SIZE = 20 << 20
QSCALE = 0.25 * 1.4426950408889634
NEG = "0xf149f2ca"
RG = 39936; SCR = 4 * RG
def XS(st): return st * 8192
def GU(st): return 24576 + st * 4096
def QS(st): return 36864 + st * 1024
def AREA(st): return [XS(st) + k * 2048 for k in range(4)] + [GU(st) + k * 2048 for k in range(2)]
SLOT = AREA(2) + AREA(0) + AREA(2) + AREA(1)[:4] + AREA(0) + AREA(2) + AREA(1)[4:]
assert len(SLOT) == 36
SPIN = 1 << 14

def resolve(lines):
    out = []; ops = []; saved = {}
    for l in lines:
        s = l.strip()
        if s.startswith("@wait "):
            tags = s.split()[1:]
            idx = -1
            for i, t in enumerate(ops):
                if t in tags: idx = i
            if idx < 0: continue
            n = len(ops) - 1 - idx
            out.append("    s_waitcnt vmcnt(%d)" % min(n, 63))
            ops = ops[idx + 1:]
        elif s.startswith("@save "): saved[s.split()[1]] = list(ops)
        elif s.startswith("@restore "): ops = list(saved[s.split()[1]])
        elif s.startswith("@clear"): ops = []
        else:
            m = re.search(r";\s*@vm (\S+)", l)
            if m: ops.append(m.group(1)); l = l[:m.start()].rstrip()
            elif s.startswith(("buffer_", "global_")): ops.append("?")
            if s.startswith("s_waitcnt") and "vmcnt(0)" in s: ops = []
            out.append(l)
    return out

def flat2(l):
    o = []
    for x in l: o += x
    return o

def gen(a0, label, opt):
    a = Asm()
    P_POS = opt.get("pos", 1)
    SC = "sc1"
    ool = Asm()
    V = Alloc("v", 1, 96)
    acc = R("v", 96, 160)
    def ACC(nb, tb): return acc[(nb * 2 + tb) * 16:(nb * 2 + tb) * 16 + 16]
    lane = V(); vl16 = V(); voD = V()
    wf = [V(20, 4), R("a", 0, 20)]
    xf = [V(8, 4), V(8, 4)]
    VO4 = V(4, 4); voX = [VO4[0], VO4[1]]; voG = VO4[2]; voQ = VO4[3]
    aG = [[V(), V()] for _ in range(4)]
    aQ = [V() for _ in range(4)]
    aX = [V() for _ in range(4)]
    PL = V(36, 4)
    t0, t1, t2, t3, t4, t5 = [PL[30 + i] for i in range(6)]
    WD = [R("a", 20 + 8 * s, 8) for s in range(18)]
    sX, sG, sU, sQ, sW, sD, sO, sOut, sDbg = [R("s", 4 + 4 * i, 4) for i in range(9)]
    (s_w, s_rt, s_ct, s_stride, s_w2048, s_w1024, s_xb, s_t, s_t2, s_ones, s_nonce, s_rt2, s_ct2, s_st8, s_wd, s_wo) = [R("s", 40 + i) for i in range(16)]
    s_i = [R("s", 56 + i) for i in range(8)]
    s_cur, s_t3 = R("s", 64), R("s", 65)
    s_m = R("s", 66, 2); s_need = R("s", 68, 2); s_cnt = R("s", 70); s_done = R("s", 71)
    tl = Timeline(a, opt.get("tl"), 0, 72)
    def stamp(n, emit=True):
        if not tl.on: return None
        tl.n = n
        return tl.stamp(emit)
    a("%s:", label)
    stamp(0)
    a("s_cmp_ge_u32 s2, %d\ns_cbranch_scc1 %s_end", 0 if opt.get("empty") else 256, label)
    for srd, off in ((sX, 0), (sQ, 8), (sG, 32), (sU, 40), (sW, 72), (sDbg, 64), (sD, 48), (sO, 16), (sOut, 56)):
        a("s_load_dwordx2 %s, s[0:1], %d", srd[0:2], off)
    s_own = s_done; s_col = s_t3; s_x = s_need[0]; s_kr = s_need[1]
    a("v_lshrrev_b32 %s, 6, v0", t0)
    a("v_and_b32 %s, 63, v0", lane)
    a("s_and_b32 %s, s2, 7\ns_lshr_b32 %s, s2, 3", s_x, s_t2)
    a("v_readfirstlane_b32 %s, %s", s_w, t0)
    a("s_and_b32 %s, %s, 3\ns_lshr_b32 %s, %s, 2", s_ct, s_t2, s_ct2, s_t2)
    a("v_lshrrev_b32 %s, 3, %s", t0, lane)
    a("s_lshl2_add_u32 %s, %s, %s\ns_and_b32 %s, %s, 7", s_rt2, s_x, s_ct, s_rt, s_rt2)
    a("v_and_b32 %s, 7, %s", t1, lane)
    a("s_lshl1_add_u32 %s, %s, %s\ns_and_b32 %s, %s, 1\ns_add_u32 %s, %s, %s", s_own, s_ct, s_ct2, s_t, s_x, s_own, s_own, s_t)
    a("v_lshrrev_b32 %s, 4, %s", t2, lane)
    ROT = opt.get("rot", 1)
    if ROT == 0: a("s_mov_b32 %s, %s", s_own, s_rt)
    a("s_and_b32 %s, %s, 7", s_own, s_own)
    if ROT == 2:
        a("s_add_u32 %s, %s, 7\ns_and_b32 %s, %s, 7", s_cur, s_own, s_cur, s_cur)
    elif ROT == 0: a("s_cselect_b32 %s, 0, 1", s_cur)
    else: a("s_cselect_b32 %s, 0, 7", s_cur)
    a("v_xor_b32 %s, %s, %s", t3, t1, t2)
    a("s_mul_i32 %s, %s, %d", s_xb, s_w, RG)
    a("v_lshlrev_b32 %s, 4, %s", t3, t3)
    a("s_lshl_b32 %s, %s, 18\ns_lshl_b32 %s, %s, 16\ns_add_u32 %s, %s, %s", s_wo, s_rt, s_t2, s_w, s_i[0], s_wo, s_t2)
    a("v_lshl_add_u32 %s, %s, 10, %s", voX[0], t0, t3)
    a("s_lshl_b32 %s, %s, 7", s_t, s_cur)
    a("s_mov_b32 %s, %d\ns_mov_b32 %s, 0x00020000", sX[2], 0x200000, sX[3])
    a("v_add_u32 %s, %s, %s", voX[0], s_t, voX[0])
    a("s_mov_b32 m0, %s", s_xb)
    a("v_xor_b32 %s, 64, %s", voX[1], voX[0])
    if opt.get("tlp"): stamp(3)
    a("s_waitcnt lgkmcnt(0)")
    if opt.get("tlp"): stamp(4)
    su = []
    su += ["s_memrealtime %s" % s_m,
           "s_lshr_b32 %s, %s, 1" % (s_ct, s_x), "s_lshl3_add_u32 %s, %s, %s" % (s_ct, s_ct, s_ct2),
           "s_lshl_b32 %s, %s, 4" % (s_kr, s_w), "s_lshl_b32 %s, %s, 6" % (s_t, s_cur), "s_add_u32 %s, %s, %s" % (s_kr, s_kr, s_t),
           "s_lshl_b32 %s, %s, 7" % (s_col, s_ct),
           "s_lshl_b32 %s, %s, 8" % (s_t, s_ct), "s_sub_u32 %s, %s, %d" % (s_t, s_t, 28 * 256 - 2048),
           ["s_add_u32 %s, s16, 128" % s_cnt, "s_addc_u32 %s, s17, 0" % s_t2],
           "s_movk_i32 %s, 3584" % s_stride, "s_mov_b32 s14, %d" % (512 * 3584),
           ["s_cmp_ge_u32 %s, 28" % s_ct, "s_cselect_b32 %s, %s, %s" % (s_col, s_t, s_col), "s_cselect_b32 %s, 3072, %s" % (s_stride, s_stride),
            "s_cselect_b32 s10, %d, s14" % (512 * 3072), "s_cselect_b32 s14, %d, s14" % (512 * 3072 - 128),
            "s_cselect_b32 s8, s16, s8", "s_cselect_b32 s9, s17, s9", "s_cselect_b32 s12, %s, s12" % s_cnt, "s_cselect_b32 s13, %s, s13" % s_t2],
           "s_mov_b32 s11, 0x00020000", "s_mov_b32 s15, 0x00020000", "s_lshl_b32 %s, %s, 3" % (s_st8, s_stride),
           "v_and_b32 %s, 1, %s" % (t3, t2), "v_lshlrev_b32 %s, 2, %s" % (t3, t3), "v_xor_b32 %s, %s, %s" % (t3, t1, t3), "v_lshlrev_b32 %s, 4, %s" % (t3, t3),
           "v_add_u32 %s, %s, %s" % (t4, s_kr, t0), "v_mul_lo_u32 %s, %s, %s" % (t4, t4, s_stride),
           "v_add3_u32 %s, %s, %s, %s" % (voG, t4, t3, s_col)]
    su2 = ["s_mov_b32 %s, %d" % (sQ[2], 512 * 3072), "s_mov_b32 %s, 0x00020000" % sQ[3],
           "v_lshrrev_b32 %s, 2, %s" % (t4, lane), "v_add_u32 %s, %s, %s" % (t4, s_kr, t4), "v_mul_u32_u24 %s, 3072, %s" % (t4, t4),
           "v_and_b32 %s, 3, %s" % (t5, lane), "v_lshlrev_b32 %s, 4, %s" % (t5, t5), "s_lshl_b32 %s, %s, 6" % (s_t, s_ct),
           "v_add3_u32 %s, %s, %s, %s" % (voQ, t4, t5, s_t),
           "s_lshl_b32 %s, %s, 11" % (s_w2048, s_w), "s_lshl_b32 %s, %s, 10" % (s_w1024, s_w),
           "s_lshl_b32 %s, %s, 13" % (s_t2, s_ct), "s_add_u32 %s, %s, %s" % (s_wo, s_wo, s_t2), "s_add_u32 %s, %s, %s" % (s_wo, s_wo, s_w2048),
           "v_lshlrev_b32 %s, 4, %s" % (vl16, lane)]
    def adv(p):
        g = []
        if p == 1: g += ["s_sub_i32 %s, %s, %s" % (s_t2, s_own, s_cur), "s_mov_b32 %s, %s" % (s_cur, s_own)]
        elif ROT == 0:
            g += ["s_cmp_le_u32 %s, %d" % (s_rt, p - 1), "s_cselect_b32 %s, %d, %d" % (s_t, p, p - 1), "s_sub_i32 %s, %s, %s" % (s_t2, s_t, s_cur), "s_mov_b32 %s, %s" % (s_cur, s_t)]
        else:
            g += ["s_cmp_eq_u32 %s, 7" % s_cur, "s_cselect_b32 %s, %d, 1" % (s_t2, -7 if ROT == 2 else -6), "s_add_i32 %s, %s, %s" % (s_cur, s_cur, s_t2)]
        g += ["s_lshl_b32 %s, %s, 7" % (s_t, s_t2),
              "v_add_u32 %s, %s, %s" % (voX[0], s_t, voX[0]), "v_add_u32 %s, %s, %s" % (voX[1], s_t, voX[1]),
              "s_mul_i32 %s, %s, %d" % (s_t, s_t2, 64 * 3072), "s_lshl_b32 %s, %s, 3" % (s_t2, s_t2),
              "v_add_u32 %s, %s, %s" % (voQ, s_t, voQ),
              "s_mul_i32 %s, %s, %s" % (s_t2, s_t2, s_st8),
              "v_add_u32 %s, %s, %s" % (voG, s_t2, voG)]
        return g
    def dx(p, i): return ["s_add_u32 m0, %s, %d" % (s_xb, XS(p % 3) + i * 1024), "s_nop 0",
                          "buffer_load_dwordx4 %s, %s, %s offen lds ; @vm d%d" % (voX[i & 1], sX, s_i[i], p)]
    def dw(p):
        st = p % 3; tag = " ; @vm d%d" % p; g = []
        for j in range(2):
            so = "0" if j == 0 else str(s_st8)
            g.append(["s_add_u32 m0, %s, %d" % (s_xb, GU(st) + j * 1024), "s_nop 0",
                      "buffer_load_dwordx4 %s, %s, %s offen lds" % (voG, sG, so) + tag])
            g.append(["s_add_u32 m0, %s, %d" % (s_xb, GU(st) + 2048 + j * 1024), "s_nop 0",
                      "buffer_load_dwordx4 %s, %s, %s offen lds" % (voG, sU, so) + tag])
        g.append(["s_add_u32 m0, %s, %d" % (s_xb, QS(st)), "s_nop 0",
                  "buffer_load_dwordx4 %s, %s, 0 offen lds" % (voQ, sQ) + tag])
        return g
    def dma(p):
        return [adv(p)] + dw(p) + [dx(p, i) for i in range(8)]
    def flat(l):
        o = []
        for x in l: o += x if isinstance(x, list) else [x]
        return o
    PT = opt.get("pt", {})
    TA, TD = PL[28], PL[29]
    ptx = ["s_lshl_b32 %s, %s, 15" % (s_t2, s_ct2), "s_lshl_b32 %s, %s, 13" % (s_t, s_w), "s_add_u32 %s, %s, %s" % (s_t2, s_t2, s_t),
           "s_lshl_b32 %s, %s, 18" % (s_t, s_rt), "s_add_u32 %s, %s, %s" % (s_t2, s_t2, s_t), "v_lshlrev_b32 %s, 7, %s" % (TA, lane),
           "buffer_load_dword %s, %s, %s, %s offen" % (TD, TA, sX, s_t2)]
    ptw = ["s_and_b32 %s, %s, 3" % (s_t, s_rt), "s_lshl_b32 %s, %s, 7" % (s_t, s_t), "s_lshl_b32 %s, %s, 5" % (s_t2, s_w), "s_add_u32 %s, %s, %s" % (s_t, s_t, s_t2),
           "v_add_u32 %s, %s, %s" % (TA, s_t, lane), "v_mul_u32_u24 %s, 3072, %s" % (PL[27], TA), "v_mul_lo_u32 %s, %s, %s" % (TA, TA, s_stride),
           "s_lshl_b32 %s, %s, 6" % (s_t, s_ct), "s_mov_b32 %s, %d" % (sQ[2], 512 * 3072), "s_mov_b32 %s, 0x00020000" % sQ[3],
           "s_mov_b32 exec_hi, 0",
           "buffer_load_dword %s, %s, %s, %s offen" % (TD, TA, sG, s_col), "buffer_load_dword %s, %s, %s, %s offen" % (TD, TA, sU, s_col),
           "buffer_load_dword %s, %s, %s, %s offen" % (TD, PL[27], sQ, s_t), "s_mov_b32 exec_hi, -1"]
    if PT.get("x") == "pre": a.ext(ptx)
    ns = len(su)
    for i in range(8):
        d = dx(0, i)
        if i: a(d[0]); a("s_add_u32 %s, %s, %d", s_i[i], s_i[0], i * 8192)
        a(d[2])
        a.ext(flat(su[i * ns // 8:(i + 1) * ns // 8]))
    if PT.get("x") == "mid": a.ext(ptx)
    if PT.get("w") == "mid": a.ext(ptw)
    for k, d in enumerate(dw(0)):
        a(d[0]); a.ext(su2[3 * k:3 * k + 3]); a(d[2])
    if PT.get("x") == "post": a.ext(ptx)
    if PT.get("w") == "post": a.ext(ptw)
    if opt.get("tlp"): stamp(5)
    XR0, XR1 = PL[0:4], PL[4:8]
    a("buffer_load_dwordx4 %s, %s, %s, %s offen", XR0, vl16, sX, s_wo)
    a("buffer_load_dwordx4 %s, %s, %s, %s offen offset:1024", XR1, vl16, sX, s_wo)
    for srd, n in ((sW, WS_SIZE), (sDbg, 256), (sD, 1792 * 1024), (sO, 512 * 1024), (sOut, 0x200000)):
        a("s_mov_b32 %s, %d\ns_mov_b32 %s, 0x00020000", srd[2], n, srd[3])
    a("s_lshl_b32 %s, %s, 7", s_t, s_ct2)
    a("v_lshl_add_u32 %s, %s, 10, %s\nv_add_u32 %s, %s, %s", voD, t0, t3, voD, s_t, voD)
    a("s_mov_b32 %s, 0x3f803f80", s_ones)
    a("s_lshl_b32 %s, %s, 4\ns_add_u32 %s, %s, s2\ns_cmp_ge_u32 %s, 16\ns_cbranch_scc1 %s_nn", s_t, s_w, s_t, s_t, s_t, label)
    a("s_waitcnt lgkmcnt(0)")
    a("s_mul_i32 %s, %s, 0x9e3779b1\ns_xor_b32 %s, %s, %s\ns_or_b32 %s, %s, 1", s_t, s_m[1], s_t, s_t, s_m[0], s_t, s_t)
    a("v_mov_b32 %s, %s\nv_mov_b32 %s, 0", t0, s_t, t1)
    a("s_mov_b64 exec, 1")
    a("buffer_atomic_cmpswap %s, off, %s, 0 sc1 ; @vm skip", R("v", t0.b, 2), sDbg)
    a("s_mov_b64 exec, -1")
    a("%s_nn:", label)
    a.L.append("@dropskip")
    D1 = dma(1); npre = opt.get("d1pre", 0)
    if npre: a.ext(flat(D1[:npre + 1])); D1 = D1[npre + 1:]
    a("v_lshrrev_b32 %s, 5, %s", t0, lane)
    a("v_bfe_u32 %s, %s, 2, 2", t1, lane)
    a("v_bfe_u32 %s, %s, 4, 1", t2, lane)
    a("v_and_b32 %s, 3, %s", t3, lane)
    a("v_lshlrev_b32 %s, 3, %s\nv_lshl_add_u32 %s, %s, 5, %s", t3, t3, t3, t2, t3)
    a("v_lshlrev_b32 %s, 10, %s\nv_lshl_add_u32 %s, %s, 7, %s\nv_add_u32 %s, %s, %s", t4, t0, t4, t1, t4, t4, t4, t3)
    a("v_lshrrev_b32 %s, 1, %s\nv_lshl_add_u32 %s, %s, 6, %s", t5, t1, t4, t5, t4)
    a("v_lshlrev_b32 %s, 9, %s\nv_lshl_add_u32 %s, %s, 6, %s\nv_add_u32 %s, %s, %s", t5, t0, t5, t1, t5, t5, t5, t3)
    for sg in range(4):
        a("s_add_u32 %s, %s, %d\ns_and_b32 %s, %s, 3", s_t, s_w, sg, s_t, s_t)
        a("s_mul_i32 %s, %s, %d", s_t2, s_t, RG)
        a("v_add_u32 %s, %s, %s", aG[sg][0], s_t2, t4)
        a("v_xor_b32 %s, 64, %s", aG[sg][1], aG[sg][0])
        a("v_add_u32 %s, %s, %s", aQ[sg], s_t2, t5)
    a("v_and_b32 %s, 31, %s", t1, lane)
    a("v_bfe_u32 %s, %s, 1, 3", t2, lane)
    a("v_lshlrev_b32 %s, 7, %s\nv_add_u32 %s, %s, %s", t1, t1, t1, s_xb, t1)
    for sg in range(4):
        a("s_add_u32 %s, %s, %d\ns_and_b32 %s, %s, 3\ns_lshl_b32 %s, %s, 1", s_t, s_w, sg, s_t, s_t, s_t, s_t)
        a("v_add_u32 %s, %s, %s\nv_xor_b32 %s, %s, %s", t3, s_t, t0, t3, t3, t2)
        a("v_lshl_add_u32 %s, %s, 4, %s", aX[sg], t3, t1)
    ss = [PL[8 + i] for i in range(4)]
    SG = PL[12:16]; cs = [PL[16 + i] for i in range(5)]; CQ = PL[16:20]; vn = PL[21]
    for r in ss + cs: a("v_mov_b32 %s, 0", r)
    a("s_mul_i32 %s, %s, %d", s_wd, s_w, 448 * 1024)

    def reads(c, sg):
        st = c % 3; p = sg & 1
        g = []
        for tb in range(2):
            g.append("ds_read_b128 %s, %s offset:%d" % (xf[p][tb * 4:tb * 4 + 4], aX[sg], st * 8192 + tb * 4096))
        for nb in range(5):
            for j in range(2):
                if nb < 4: ad, off = aG[sg][nb & 1], GU(st) + (nb >> 1) * 2048 + j * 512
                else: ad, off = aQ[sg], QS(st) + j * 256
                g.append("ds_read_b64_tr_b16 %s, %s offset:%d" % (wf[p][nb * 4 + 2 * j:nb * 4 + 2 * j + 2], ad, off))
        return g
    def mfmas(p, typeB, first):
        g = []
        for nb in range(5):
            for tb in range(2):
                A, B = wf[p][nb * 4:nb * 4 + 4], xf[p][tb * 4:tb * 4 + 4]
                if typeB and nb < 4: A, B = B, A
                g.append("v_mfma_f32_32x32x16_bf16 %s, %s, %s, %s" % (ACC(nb, tb), A, B, "0" if first else str(ACC(nb, tb))))
        return g
    GB = [R("s", 12 + g) for g in range(7)]
    aW = [R("v", 0), PL[2]]
    def w2dma(s, j):
        if s < 28: srd, base, off = sD, GB[s >> 2], ((s & 3) * 16 + 8 * j) * 1024
        else: srd, base, off = sO, s_wo, ((s - 28) * 16 + 8 * j) * 1024
        return ["s_add_u32 m0, %s, %d" % (s_xb, SLOT[s] + j * 1024), "s_add_u32 %s, %s, %d" % (s_t3, base, off),
                "buffer_load_dwordx4 %s, %s, %s offen lds ; @vm w%d" % (voD, srd, s_t3, s)]
    def w2d(lo, hi): return [w2dma(s, j) for s in range(lo, hi) for j in range(2)]
    def trd(s, aw=None):
        aw = aw or aW; dst = WD[s % 18]
        g = ["ds_read_b64_tr_b16 %s, %s offset:%d" % (dst[4 * nb + 2 * j:4 * nb + 2 * j + 2], aw[nb], SLOT[s] + j * 1024) for nb in range(2) for j in range(2)]
        g[0] = ["@wait w%d" % s, g[0]]
        return g

    if opt.get("tlp") != 2: stamp(1)
    a("@wait d0\ns_barrier")
    stamp(2)
    a.ext(reads(0, 0))
    a("@save br")
    a("s_cmp_ge_u32 %s, 28\ns_cbranch_scc1 %s_B", s_ct, label)
    SL = [PL[0:4], PL[4:8]]; C0, C1 = PL[8:12], PL[12:16]
    AB = PL[16:34]; T4, T5 = PL[34], PL[35]
    for typeB in (False, True):
        tg = "AB"[typeB]
        if typeB: a("%s_B:\n@restore br", label)
        fill = [[] for _ in range(320)]
        def put(g0, groups, per=2):
            for k, gr in enumerate(groups):
                fill[g0 + k // per].append(gr if isinstance(gr, list) else [gr])
            return g0 + (len(groups) + per - 1) // per
        st = ["@wait st"]
        for i in range(4):
            st += ["v_dot2c_f32_bf16 %s, %s, %s" % (ss[0], s_ones, XR0[i]), "v_dot2c_f32_bf16 %s, %s, %s" % (ss[1], XR0[i], XR0[i]),
                   "v_dot2c_f32_bf16 %s, %s, %s" % (ss[2], s_ones, XR1[i]), "v_dot2c_f32_bf16 %s, %s, %s" % (ss[3], XR1[i], XR1[i])]
        st += [["s_nop 2", "v_permlane32_swap_b32 %s, %s" % (ss[0], ss[2])], "v_permlane32_swap_b32 %s, %s" % (ss[1], ss[3]),
               "v_add_f32 %s, %s, %s" % (ss[0], ss[0], ss[2]), "v_add_f32 %s, %s, %s" % (ss[1], ss[1], ss[3]),
               ["s_nop 1", "v_permlane16_swap_b32 %s, %s" % (ss[0], ss[1])],
               "v_add_f32 %s, %s, %s" % (ss[0], ss[0], ss[1])]
        for sh in (8, 4, 2, 1):
            st.append(["s_nop 1", "v_add_f32_dpp %s, %s, %s row_ror:%d row_mask:0xf bank_mask:0xf" % (ss[0], ss[0], ss[0], sh)])
        st += ["v_mov_b32 %s, %s" % (ss[1], ss[0]), ["s_nop 1", "v_permlane16_swap_b32 %s, %s" % (ss[0], ss[1])],
               "v_mul_f32 %s, %s, %s" % (SG[0], fx(-1.0 / 512), ss[0]),
               "v_mul_f32 %s, %s, %s" % (ss[1], fx(1.0 / 512), ss[1]),
               "v_fma_f32 %s, -%s, %s, %s" % (ss[1], SG[0], SG[0], ss[1]),
               "v_max_f32 %s, 0, %s" % (ss[1], ss[1]),
               "v_add_f32 %s, %s, %s" % (SG[2], fx(1e-5), ss[1]),
               "v_rsq_f32 %s, %s" % (SG[1], SG[2])]
        put(opt.get("st0", 8), st, 2)
        g0 = 40 * P_POS
        put(g0, ["v_dot2c_f32_bf16 %s, %s, %s" % (cs[nb], s_ones, wf[0][nb * 4 + i]) for i in range(4) for nb in range(5)], 2)
        put(g0 + 12, ["v_mov_b32 %s, %s" % (T4, cs[4]), "v_permlane32_swap_b32 %s, %s" % (cs[0], cs[1]), "v_permlane32_swap_b32 %s, %s" % (cs[2], cs[3]),
                      "v_permlane32_swap_b32 %s, %s" % (cs[4], T4),
                      "v_add_f32 %s, %s, %s" % (CQ[0], cs[0], cs[1]), "v_add_f32 %s, %s, %s" % (CQ[1], cs[2], cs[3]), "v_add_f32 %s, %s, %s" % (CQ[2], cs[4], T4),
                      ["s_add_u32 %s, %s, %d" % (s_t3, s_w1024, SCR), "v_add_u32 %s, %s, %s" % (T4, s_t3, vl16)],
                      "v_add_u32 %s, %d, %s" % (T5, SCR, vl16),
                      "ds_write_b128 %s, %s" % (T4, CQ)], 2)
        g0 = 40 * max(1, P_POS) + 32
        LL = [PL[0:4], PL[4:8], PL[8:12], CQ]
        g1 = put(g0, [["@wait nonce", "v_readfirstlane_b32 %s, %s" % (s_nonce, vn)],
                 ["s_cmp_eq_u32 %s, 0" % s_nonce, "s_cbranch_scc1 %s_rn%s" % (label, tg), "%s_rnr%s:" % (label, tg)],
                 ["v_lshrrev_b32 %s, 5, %s" % (T4, lane), "v_lshlrev_b32 %s, 4, %s" % (T4, T4)],
                 ["v_mov_b32 %s, %s" % (SG[3], s_nonce)],
                 ["s_lshr_b32 %s, %s, 6" % (s_t3, s_wo), "s_add_u32 %s, %s, %d" % (s_t3, s_t3, WS_ST), "s_mov_b32 exec_lo, 1", "s_mov_b32 exec_hi, 1", "buffer_store_dwordx4 %s, %s, %s, %s offen %s" % (SG, T4, sW, s_t3, SC), "s_mov_b64 exec, -1"]] , 1)
        put(g0 + 6, ["ds_read_b128 %s, %s offset:%d" % (LL[k], T5, k * 1024) for k in range(4)], 2)
        ool("%s_rn%s:", label, tg)
        ool("s_mov_b32 %s, %d", s_cnt, SPIN)
        ool("%s_rn%s_l:", label, tg)
        ool("buffer_load_dword %s, off, %s, 0 sc1\ns_waitcnt vmcnt(0)\nv_readfirstlane_b32 %s, %s", vn, sDbg, s_nonce, vn)
        ool("s_cmp_lg_u32 %s, 0\ns_cbranch_scc1 %s_rnr%s", s_nonce, label, tg)
        ool("s_sleep 2\ns_sub_u32 %s, %s, 1\ns_cmp_lg_u32 %s, 0\ns_cbranch_scc1 %s_rn%s_l\ns_branch %s_rnr%s", s_cnt, s_cnt, s_cnt, label, tg, label, tg)
        ad = []
        for e in range(3): ad += ["v_add_f32 %s, %s, %s" % (LL[0][e], LL[0][e], LL[1][e]), "v_add_f32 %s, %s, %s" % (CQ[e], CQ[e], LL[2][e])]
        for e in range(3): ad += ["v_add_f32 %s, %s, %s" % (CQ[e], CQ[e], LL[0][e])]
        ad += [["v_mov_b32 %s, %s" % (CQ[3], s_nonce), "s_lshl_b32 %s, %s, 3" % (s_t3, s_ct), "s_add_u32 %s, %s, %s" % (s_t3, s_t3, s_rt),
                "s_lshl_b32 %s, %s, 10" % (s_t3, s_t3), "s_add_u32 %s, %s, %d" % (s_t3, s_t3, WS_CS),
                "s_lshl_b32 %s, %s, 4" % (s_cnt, s_w), "s_lshl_b64 exec, 0xffff, %s" % s_cnt,
                "buffer_store_dwordx4 %s, %s, %s, %s offen %s" % (CQ, vl16, sW, s_t3, SC), "s_mov_b64 exec, -1",
                "s_lshl_b32 %s, %s, 17" % (s_wo, s_w)]]
        put(g0 + 8, ad, 2)
        def gloads():
            return [["v_and_b32 %s, 31, %s" % (T4, lane), "v_lshlrev_b32 %s, 4, %s" % (T4, T4),
                     "s_lshr_b32 %s, %s, 6" % (s_t3, s_i[0]), "s_add_u32 %s, %s, %d" % (s_t3, s_t3, WS_ST),
                     "buffer_load_dwordx4 %s, %s, %s, %s offen %s ; @vm g" % (SL[0], T4, sW, s_t3, SC)],
                    ["buffer_load_dwordx4 %s, %s, %s, %s offen offset:512 %s ; @vm g" % (SL[1], T4, sW, s_t3, SC)],
                    ["s_lshl_b32 %s, %s, 13" % (s_t3, s_ct), "s_add_u32 %s, %s, %s" % (s_t3, s_t3, s_w2048), "s_add_u32 %s, %s, %d" % (s_t3, s_t3, WS_CS),
                     "buffer_load_dwordx4 %s, %s, %s, %s offen %s ; @vm g" % (C0, vl16, sW, s_t3, SC),
                     "buffer_load_dwordx4 %s, %s, %s, %s offen offset:1024 %s ; @vm g" % (C1, vl16, sW, s_t3, SC)]]
        gl = gloads(); gl = [gl[0] + gl[1], gl[2]]
        def gcheck():
            return ["v_xor_b32 %s, %s, %s" % (SL[0][3], s_nonce, SL[0][3]), "v_xor_b32 %s, %s, %s" % (SL[1][3], s_nonce, SL[1][3]),
                    "v_xor_b32 %s, %s, %s" % (C0[3], s_nonce, C0[3]), "v_xor_b32 %s, %s, %s" % (C1[3], s_nonce, C1[3]),
                    "v_or3_b32 %s, %s, %s, %s" % (C0[3], C0[3], C1[3], SL[0][3]), "v_or_b32 %s, %s, %s" % (C0[3], C0[3], SL[1][3]),
                    "v_cmp_ne_u32 %s, 0, %s" % (s_m, C0[3])]
        GC = opt.get("gchk", 260)
        c1 = [["@wait g"] + gcheck()[:2]] + gcheck()[2:] + [
              ["s_cmp_lg_u64 %s, 0" % s_m, "s_cbranch_scc1 %s_rg%s" % (label, tg), "%s_rgr%s:" % (label, tg)]]
        c1 += ["v_add_f32 %s, %s, %s" % (C0[e], C0[e], C1[e]) for e in range(3)]
        c1 += [["s_add_u32 %s, %s, %d" % (s_t3, s_w1024, SCR), "v_add_u32 %s, %s, %s" % (T4, s_t3, vl16)], "ds_write_b128 %s, %s" % (T4, C0)]
        ge = put(GC, c1, 2); assert ge <= 270
        ool("%s_rg%s:", label, tg)
        ool("s_mov_b32 %s, %d", s_cnt, SPIN)
        ool("%s_rg%s_l:", label, tg)
        ool("s_sleep 2")
        for g in gloads(): ool.ext([re.sub(r" ; @vm.*", "", x) for x in g])
        ool("s_waitcnt vmcnt(0)"); ool.ext(gcheck())
        ool("s_cmp_eq_u64 %s, 0\ns_cbranch_scc1 %s_rgr%s", s_m, label, tg)
        ool("s_sub_u32 %s, %s, 1\ns_cmp_lg_u32 %s, 0\ns_cbranch_scc1 %s_rg%s_l\ns_branch %s_rgr%s", s_cnt, s_cnt, s_cnt, label, tg, label, tg)
        L2 = [C0, C1, AB[0:4], VO4]
        put(272, ["ds_read_b128 %s, %s offset:%d" % (L2[k], T5, k * 1024) for k in range(4)], 1)
        b = ["s_mov_b32 %s, 0" % s_m[0], "s_mov_b32 %s, -1" % s_m[1]]
        for tb in range(2):
            B = AB[6 + 6 * tb:12 + 6 * tb]; mean = SL[tb][0]
            b += ["v_cvt_pk_bf16_f32 %s, %s, 0" % (B[1], mean), "v_lshlrev_b32 %s, 16, %s" % (T4, B[1]), "v_sub_f32 %s, %s, %s" % (T4, mean, T4),
                  "v_cvt_pk_bf16_f32 %s, %s, %s" % (B[0], mean, T4),
                  "v_cndmask_b32 %s, 0, %s, %s" % (B[4], B[0], s_m), "v_cndmask_b32 %s, 0, %s, %s" % (B[5], B[1], s_m),
                  "v_cndmask_b32 %s, %s, 0, %s" % (B[0], B[0], s_m), "v_cndmask_b32 %s, %s, 0, %s" % (B[1], B[1], s_m),
                  "v_mov_b32 %s, 0" % B[2], "v_mov_b32 %s, 0" % B[3]]
        if typeB:
            b += [["v_and_b32 %s, 31, %s" % (T4, lane), "v_lshl_add_u32 %s, %s, 2, %s" % (T4, T4, s_xb)]]
            b += ["ds_write_b32 %s, %s offset:%d" % (T4, SL[tb][1], QS(2) + tb * 128) for tb in range(2)]
        ge = put(276, b, 2)
        ad = []
        for e in range(3): ad += ["v_add_f32 %s, %s, %s" % (C0[e], C0[e], C1[e]), "v_add_f32 %s, %s, %s" % (VO4[e], VO4[e], AB[e])]
        for e in range(3): ad += ["v_add_f32 %s, %s, %s" % (C0[e], C0[e], VO4[e])]
        for e, pos in ((2, 0), (0, 2), (1, 4)):
            ad += ["v_cvt_pk_bf16_f32 %s, %s, %s" % (AB[pos], C0[e], C0[e]), "v_lshlrev_b32 %s, 16, %s" % (T4, AB[pos]),
                   "v_sub_f32 %s, %s, %s" % (T4, C0[e], T4), "v_cvt_pk_bf16_f32 %s, %s, 0" % (AB[pos + 1], T4)]
        ge = put(max(ge, 280), ad, 2); assert ge <= 316, ge
        def spread(items, lo, hi):
            n = len(items)
            for q in range(n - 1, -1, -1):
                it = items[q]
                fill[lo + (q * (hi - lo)) // n].insert(0, it if isinstance(it, list) else [it])
        d2lo = opt.get("d2lo", 18)
        spread(dma(2), d2lo, 31); spread(D1, 0, opt.get("d1hi", 14))
        gb = [["s_cmp_eq_u32 %s, 7" % s_ct2, "s_cselect_b32 %s, 0, %s" % (s_t3, s_ct2 if opt.get("hrot", 1) else 0), "s_lshl_b32 %s, %s, 16" % (s_t3, s_t3),
               "s_add_u32 %s, %s, %s" % (GB[0], s_wd, s_t3), "s_add_u32 s19, %s, %d" % (s_wd, 7 << 16)]]
        for g in range(1, 7):
            gb.append(["s_add_u32 %s, %s, %d" % (GB[g], GB[g - 1], 1 << 16), "s_cmp_eq_u32 %s, s19" % GB[g], "s_cselect_b32 %s, %s, %s" % (GB[g], s_wd, GB[g])])
        put(224, gb, 1)
        v0 = aW[0]
        put(200, ["v_lshrrev_b32 %s, 5, %s" % (v0, lane), "v_bfe_u32 %s, %s, 2, 2" % (T4, lane), "v_lshl_add_u32 %s, %s, 2, %s" % (v0, v0, T4), "v_lshlrev_b32 %s, 7, %s" % (v0, v0),
                  "v_lshrrev_b32 %s, 1, %s" % (T4, T4), "v_lshl_add_u32 %s, %s, 6, %s" % (v0, T4, v0),
                  "v_bfe_u32 %s, %s, 4, 1" % (T4, lane), "v_lshl_add_u32 %s, %s, 5, %s" % (v0, T4, v0),
                  "v_and_b32 %s, 1, %s" % (T4, lane), "v_lshl_add_u32 %s, %s, 4, %s" % (v0, T4, v0),
                  "v_bfe_u32 %s, %s, 1, 1" % (T4, lane), "v_lshl_add_u32 %s, %s, 3, %s" % (v0, T4, v0),
                  ["s_lshr_b32 %s, %s, 1" % (s_t3, s_w), "s_lshl_b32 %s, %s, 6" % (s_t3, s_t3), "v_xor_b32 %s, %s, %s" % (v0, s_t3, v0)],
                  "v_add_u32 %s, %s, %s" % (v0, s_xb, v0)], 1)
        put(271, ["v_xor_b32 %s, 64, %s" % (aW[1], v0)], 1)
        spread(gl + w2d(0, 6), 232, opt.get("w5hi", 262))
        spread(w2d(6, 12), 272, 290)
        tro = opt.get("tro", 2)
        put(280 + tro, flat2([trd(s) for s in range(0, 3)]), 2); put(290 + tro, flat2([trd(s) for s in range(3, 6)]), 2)
        spread(w2d(12, 15), 290, 300); spread(w2d(15, 18), 300, 318)
        put(300 + tro, flat2([trd(s) for s in range(6, 9)]), 2); put(310, flat2([trd(s) for s in range(9, 12)]), 2)
        for k in range(0, 5):
            lo = 40 * k + 32; hi = 40 * (k + 1) + 31 if k < 4 else 224
            dm = dma(k + 3); ex = []
            if k == 0: ex = [["buffer_load_dword %s, off, %s, 0 sc1 ; @vm nonce" % (vn, sDbg)]]
            if k == 0:
                SN = PL[24:28]
                ex = ex + [["v_mov_b32 %s, -1" % SN[e] for e in range(4)] +
                           ["s_lshr_b32 %s, %s, 15" % (s_t3, s_i[0]), "s_mul_i32 %s, %s, 144" % (s_t3, s_t3), "s_and_b32 %s, %s, 15" % (s_cnt, s_ct), "s_lshl1_add_u32 %s, %s, %s" % (s_t3, s_cnt, s_t3),
                            "s_lshr_b32 %s, %s, 4" % (s_cnt, s_ct), "s_add_u32 %s, %s, %s" % (s_t3, s_t3, s_cnt),
                            "s_lshl_b32 %s, %s, 10" % (s_t3, s_t3), "s_add_u32 %s, %s, %d" % (s_t3, s_t3, WS_AF),
                            "buffer_store_dwordx4 %s, %s, %s, %s offen %s" % (SN, vl16, sW, s_t3, SC),
                            "s_add_u32 %s, %s, %d" % (s_t3, s_t3, 144 * 1024),
                            "buffer_store_dwordx4 %s, %s, %s, %s offen %s" % (SN, vl16, sW, s_t3, SC)]]
            for (tw, kind) in opt.get("touch", [[1, "A"], [2, "B"], [3, "C"]]):
                if tw != k: continue
                TA, TD = PL[28], PL[29]
                h = ["s_lshr_b32 %s, s2, 3" % s_t3]
                if kind == "A":
                    h += ["s_lshl_b32 %s, %s, 13" % (s_t3, s_t3), "s_add_u32 %s, %s, %s" % (s_t3, s_t3, s_wd), "v_lshlrev_b32 %s, 7, %s" % (TA, lane),
                          "buffer_load_dword %s, %s, %s, %s offen" % (TD, TA, sD, s_t3)]
                elif kind == "B":
                    h += ["s_mul_i32 %s, %s, 6144" % (s_t3, s_t3), "s_add_u32 %s, %s, %s" % (s_t3, s_t3, s_wd), "s_add_u32 %s, %s, %d" % (s_t3, s_t3, 256 * 1024),
                          "v_min_u32 %s, 47, %s" % (TA, lane), "v_lshlrev_b32 %s, 7, %s" % (TA, TA),
                          "buffer_load_dword %s, %s, %s, %s offen" % (TD, TA, sD, s_t3)]
                elif kind == "C":
                    h += ["s_lshl_b32 %s, %s, 14" % (s_t3, s_t3), "s_lshl_b32 %s, %s, 2" % (s_cnt, s_w1024), "s_add_u32 %s, %s, %s" % (s_t3, s_t3, s_cnt),
                          "v_and_b32 %s, 31, %s" % (TA, lane), "v_lshlrev_b32 %s, 7, %s" % (TA, TA),
                          "buffer_load_dword %s, %s, %s, %s offen" % (TD, TA, sO, s_t3)]
                ex = [h] + ex
            items = merge(dm, ex) if dm and ex else dm + ex
            spread(items, lo, hi)
        for c in range(8):
            if c in (2, 4, 6) and not opt.get("tlp"): stamp(2 + c // 2)
            for sg in range(4):
                a("s_waitcnt lgkmcnt(0)")
                m = mfmas(sg & 1, typeB, c == 0 and sg == 0)
                rd = reads(c, sg + 1) if sg < 3 else (reads(c + 1, 0) if c < 7 else [])
                k = 0
                for i, x in enumerate(m):
                    a(x)
                    if sg == 3 and c < 7 and i == 1: a("@wait d%d\ns_barrier", c + 1)
                    if sg < 3 or i >= 1:
                        for _ in range(2):
                            if k < len(rd): a(rd[k]); k += 1
                    for gr in fill[c * 40 + sg * 10 + i]: a.ext(gr)
                assert k == len(rd)
        stamp(6)
        Aw = {0: AB[2:6], 1: AB[0:4], 2: AB[4:8], 3: AB[2:6], 4: AB[0:4]}
        useX = {0: 1, 1: 0, 2: 1, 3: 0, 4: 1}
        def corr(nb, tb):
            B = AB[6 + 6 * tb:12 + 6 * tb]; B = B[0:4] if useX[nb] else B[2:6]
            A = Aw[nb]
            if typeB and nb < 4: A, B = B, A
            return "v_mfma_f32_32x32x16_bf16 %s, %s, %s, %s" % (ACC(nb, tb), A, B, ACC(nb, tb))
        rstd = [SL[0][1], SL[1][1]]
        e0, e1, e2 = [xf[0][i] for i in range(3)]
        sc2 = [R("v", xf[0].b + 4, 2), R("v", xf[0].b + 6, 2)]
        order = [(4, 0), (4, 1), (0, 0), (2, 0), (0, 1), (2, 1), (1, 0), (3, 0), (1, 1), (3, 1)] if not typeB else \
                [(4, 0), (4, 1)] + [(nb, tb) for tb in range(2) for nb in range(4)]
        M = [corr(*o) for o in order]
        f = []
        f += [["s_lshl_b32 %s, %s, 3" % (s_t, s_rt), "s_lshl_b32 %s, %s, 1" % (s_t2, s_w), "s_add_u32 %s, %s, %s" % (s_i[0], s_t, s_t2),
               "s_lshr_b32 %s, %s, 4" % (s_t, s_ct), "s_lshl_b32 %s, %s, 21" % (s_t, s_t),
               "s_lshl_b32 %s, %s, 15" % (s_t2, s_i[0]), "s_add_u32 %s, %s, %s" % (s_t, s_t, s_t2),
               "s_and_b32 %s, %s, 15" % (s_t2, s_ct), "s_lshl_b32 %s, %s, 11" % (s_t2, s_t2), "s_add_u32 %s, %s, %s" % (s_i[1], s_t, s_t2),
               "s_add_u32 %s, %s, %d" % (s_i[2], s_i[1], 32768),
               "s_cmp_lt_u32 %s, 16" % s_ct, "s_cselect_b32 %s, %s, 1.0" % (s_t, fx(QSCALE))]]
        f += [["v_mul_f32 %s, %s, %s" % (sc2[tb][0], s_t, rstd[tb]), "v_mul_f32 %s, %s, %s" % (sc2[tb][1], s_t, rstd[tb])] for tb in range(2)]
        if not typeB:
            f += [["s_mul_i32 %s, %s, %d" % (s_i[3], s_i[0], 144 * 1024), "s_lshl_b32 %s, %s, 12" % (s_t2, s_ct), "s_add_u32 %s, %s, %s" % (s_i[3], s_i[3], s_t2),
                   "s_add_u32 %s, %s, %d" % (s_i[3], s_i[3], WS_AF + 32 * 1024), "s_add_u32 %s, %s, %d" % (s_i[4], s_i[3], 144 * 1024)]]
        else:
            RS = [wf[0][0:16], aG[0][0]]
            RS = [wf[0][0:16], R("v", aG[0][0].b, 16)]
            assert RS[1].b % 2 == 0
            f += [["v_bfe_u32 %s, %s, 4, 1" % (e1, lane), "v_lshlrev_b32 %s, 10, %s" % (e1, e1),
                   "v_lshrrev_b32 %s, 5, %s" % (e2, lane), "v_lshl_add_u32 %s, %s, 8, %s" % (e1, e2, e1),
                   "v_and_b32 %s, 15, %s" % (e0, lane), "v_lshl_add_u32 %s, %s, 4, %s" % (e1, e0, e1),
                   "v_lshl_add_u32 %s, %s, 4, %s" % (e2, e2, s_xb)] +
                  ["ds_read_b128 %s, %s offset:%d" % (RS[tb][g * 4:g * 4 + 4], e2, QS(2) + tb * 128 + g * 32) for tb in range(2) for g in range(4)] +
                  ["s_lshl_b32 %s, %s, 15" % (s_i[3], s_i[0]), "s_sub_u32 %s, %s, 28" % (s_t2, s_ct), "s_lshl_b32 %s, %s, 13" % (s_t2, s_t2),
                   "s_add_u32 %s, %s, %s" % (s_i[3], s_i[3], s_t2), "s_add_u32 %s, %s, %d" % (s_i[3], s_i[3], WS_V),
                   "s_add_u32 %s, %s, %d" % (s_i[4], s_i[3], 32768), "s_add_u32 %s, %s, %d" % (s_i[5], s_i[3], 4096), "s_add_u32 %s, %s, %d" % (s_i[6], s_i[4], 4096)]]
        for i in range(4):
            a(M[i]); a.ext(f[i])
        def qk(tb):
            G = ACC(4, tb); g = []
            for i in range(0, 16, 2): g.append("v_pk_mul_f32 %s, %s, %s" % (G[i:i + 2], G[i:i + 2], sc2[tb]))
            for i in range(0, 16, 2): g.append("v_cvt_pk_bf16_f32 %s, %s, %s" % (G[i // 2], G[i], G[i + 1]))
            for hf in range(2): g.append("buffer_store_dwordx4 %s, %s, %s, %s offen offset:%d %s" % (G[hf * 4:hf * 4 + 4], vl16, sW, s_i[1 + tb], hf * 1024, SC + " ; @vm es"))
            return g
        a.ext(interleave(M[4:], qk(0) + qk(1)))
        if not typeB:
            for nb in range(2):
                for tb in range(2):
                    G, U = ACC(nb, tb), ACC(nb + 2, tb)
                    for i in range(0, 16, 2): a("v_pk_mul_f32 %s, %s, %s", G[i:i + 2], G[i:i + 2], U[i:i + 2])
                    for i in range(0, 16, 2): a("v_cvt_pk_bf16_f32 %s, %s, %s", G[i // 2], G[i], G[i + 1])
                    for hf in range(2):
                        a("buffer_store_dwordx4 %s, %s, %s, %s offen offset:%d %s", G[hf * 4:hf * 4 + 4], vl16, sW, s_i[3 + tb], (2 * nb + hf) * 1024, SC + " ; @vm es")
            a("@save p2\ns_branch %s_p2", label)
        else:
            a("s_waitcnt lgkmcnt(0)")
            for tb in range(2):
                for nb in range(4):
                    G = ACC(nb, tb)
                    for i in range(0, 16, 2): a("v_pk_mul_f32 %s, %s, %s", G[i:i + 2], G[i:i + 2], RS[tb][i:i + 2])
                    for i in range(0, 16, 2): a("v_cvt_pk_bf16_f32 %s, %s, %s", G[i // 2], G[i], G[i + 1])
                    for hf in range(2):
                        a("buffer_store_dwordx4 %s, %s, %s, %s offen offset:%d %s", G[hf * 4:hf * 4 + 4], e1, sW, s_i[3 + tb + 2 * (nb >> 1)], (nb & 1) * 2048 + hf * 512, SC + " ; @vm es")
    import importlib
    importlib.import_module(opt.get("p2", "g2")).phase2(a, ool, label, opt, locals())
    a("%s_end:\ns_endpgm", label)
    lines = []
    for l in a.L: lines += l.split("\n")
    lines = [l.replace(" ; @vm skip", " ; @novm") for l in lines if l != "@dropskip"]
    a0.L += resolve2(lines) + ool.L
    return dict(vgpr=512, accum=256, lds=163840)

def resolve2(lines):
    tmp = []
    for l in lines:
        tmp.append(l)
    out = []
    hidden = {}
    for k, l in enumerate(tmp):
        if "@novm" in l:
            hidden["@@%d" % k] = l.replace(" ; @novm", ""); out.append("@@%d" % k)
        else: out.append(l)
    res = resolve(out)
    return [hidden.get(l, l) for l in res]
```

```python
from asmlib import *
import sch, struct, re
from sch import Sch, G
def f2u(f): return struct.unpack("<I", struct.pack("<f", f))[0]
def fx(f): return "0x%08x" % f2u(f)
MF = "v_mfma_f32_32x32x16_bf16"
MB = 1 << 20
WS_QK = 1 * MB
WS_V  = 5 * MB
WS_ON = 7 * MB
WS_AF = 9 * MB
WS_CS = 18 * MB
WS_ST = WS_CS + (512 << 10)
WS_FL = 19 * MB
WS_SIZE = 20 * MB
QSCALE = 0.25 * 1.4426950408889634
NEG = "0xf149f2ca"
SPIN = 1 << 14
AR = 8192
SC = "sc1"
NM = 330
def F(n): return 24 * n if n <= 8 else 192 + 16 * (n - 8)
def M(f): return f if f < 192 else f + 10
def Bg(n): return M(F(n + 1) - 8)
P2A = {8: 12, 9: 0, 10: 2, 11: 4, 12: 6, 13: 8, 14: 10, 15: 12}
P2B = {9: 5, 10: 6, 11: 6, 12: 7, 13: 8, 14: 8, 15: 9}
SCRA = 19
def flat(l):
    o = []
    for x in l: o += flat(x) if isinstance(x, (list, tuple)) else [x]
    return o
def vv(b, n=1): return R("v", b, n)
def aa(b, n=1): return R("a", b, n)
def ss(b, n=1): return R("s", b, n)

def gen(a0, label, opt):
    a = Asm(); ool = Asm()
    POS = opt.get("pos", 1); PB = opt.get("pb", POS); ORD = opt.get("ord", 0)
    P2POS = [POS] + [p for p in range(8) if p != POS]
    RANK = {p: k for k, p in enumerate(P2POS)}
    voXr = vv(0); lane = vv(1); vl16 = vv(2); voQ = [vv(3), vv(4)]; voG = [vv(5), vv(6)]; voX = [vv(7), vv(8)]; voD = [vv(9), vv(10)]
    aS = [vv(11), vv(12), vv(13), vv(14)]; aX = [vv(15 + i) for i in range(4)]; aP = [vv(19), vv(20)]; vn = vv(21)
    T = [vv(22 + i) for i in range(4)]
    voK, voV, vP, vF = vv(26), vv(27), vv(28), vv(29); voA = [vv(30), vv(31)]
    AB = vv(32, 18); SL = vv(52, 4); vsc = vv(56); RS = vv(32, 16); CL = vv(32, 16); CF = vv(48, 16)
    RING = [vv(64 + 4 * i, 4) for i in range(8)]
    A1 = [vv(96 + 16 * i, 16) for i in range(6)]; A2 = [vv(192 + 16 * i, 16) for i in range(4)]
    def XF(p, s): return aa(16 * RANK[p] + 4 * s, 4)
    WD = [aa(128 + 8 * s, 8) for s in range(16)]
    XR = [vv(192, 4), vv(196, 4)]; sq = [vv(200 + i) for i in range(4)]; SG = vv(204, 4)
    CFR = [vv(208 + 4 * i, 4) for i in range(6)]; SN = vv(232, 4); ON = vv(236, 4); aC = [vv(240 + i) for i in range(3)]
    CS = vv(248, 4); CT = [vv(252 + i) for i in range(3)]
    sX, sG, sU, sQ, sW, sD, sO, sOut, sDbg = [ss(4 + 4 * i, 4) for i in range(9)]
    names = "w w2k pm pg tok c rt2 ct2 ones nonce t t2 t3 cnt qc gc xc wd wg ws e0 e1 kb ah hg ao os xo fl st lim csb".split()
    S = {n: ss(40 + i) for i, n in enumerate(names)}
    assert 40 + len(names) <= 72
    s_m = ss(72, 2); s_need = ss(74, 2)
    s_w, s_w2k, s_t, s_t2, s_t3, s_cnt = S["w"], S["w2k"], S["t"], S["t2"], S["t3"], S["cnt"]
    tl = Timeline(a, opt.get("tl"), 0, 76, nmax=13)
    def stamp(n, emit=True):
        if not tl.on: return None
        tl.n = n
        return tl.stamp(emit)
    class D(dict):
        def __missing__(s, k): raise KeyError(k)
    env = D({("s_" + k): str(v) for k, v in S.items()})
    env.update(lane=lane, vl16=vl16, t0=T[0], t1=T[1], t2=T[2], t3=T[3], L=label, sW=sW, SC=SC, s_m=s_m, vn=vn)
    def X(txt, **kw):
        e = D(env); e.update(kw)
        return [l.strip() for l in txt.format_map(e).split("\n") if l.strip()]
    a("%s:", label)
    stamp(0)
    a("s_cmp_ge_u32 s2, 256\ns_cbranch_scc1 %s_end", label)
    for srd, off in ((sX, 0), (sQ, 8), (sG, 32), (sU, 40), (sW, 72), (sDbg, 64), (sD, 48), (sO, 16), (sOut, 56)):
        a("s_load_dwordx2 %s, s[0:1], %d", srd[0:2], off)
    a.ext(X("""
        v_lshrrev_b32 {t0}, 6, v0
        v_and_b32 {lane}, 63, v0
        s_and_b32 {s_e0}, s2, 7
        s_lshr_b32 {s_e1}, s2, 3
        v_readfirstlane_b32 {s_w}, {t0}
        s_and_b32 {s_kb}, {s_e1}, 7
        s_lshr_b32 {s_ah}, {s_e0}, 1
        s_lshr_b32 {s_hg}, {s_e1}, 3
        v_lshrrev_b32 {t0}, 3, {lane}
        v_and_b32 {t1}, 7, {lane}
        v_lshrrev_b32 {t2}, 4, {lane}
        s_and_b32 {s_t}, {s_e0}, 1
        s_lshl3_add_u32 {s_tok}, {s_t}, {s_kb}
        s_lshl2_add_u32 {s_tok}, {s_tok}, {s_w}
        s_lshl2_add_u32 {s_c}, {s_ah}, {s_hg}
        s_lshl_b32 {s_w2k}, {s_w}, 11
        s_lshl1_add_u32 {s_csb}, {s_c}, {s_t}
        s_lshl2_add_u32 {s_csb}, {s_csb}, {s_w}
        s_lshl_b32 {s_csb}, {s_csb}, 12
        s_add_u32 {s_csb}, {s_csb}, %d
        v_xor_b32 {t3}, {t1}, {t2}
        v_lshlrev_b32 {t3}, 4, {t3}
        v_lshl_add_u32 {x0}, {t0}, 10, {t3}
        s_lshl_b32 {s_t}, {s_tok}, 15
        v_add_u32 {x0}, {s_t}, {x0}
        v_xor_b32 {x1}, 64, {x0}
        v_add_u32 {x1}, 7168, {x1}
        """ % WS_CS, x0=voX[0], x1=voX[1]))
    if ORD == 0:
        a.ext(X("""
        s_lshl_b32 {s_t}, {s_kb}, 2
        s_bfm_b32 {s_t2}, {s_t}, 0
        s_and_b32 {s_t3}, {s_t2}, 0x76543210
        s_andn2_b32 {s_t2}, 0x07654321, {s_t2}
        s_or_b32 {s_t3}, {s_t3}, {s_t2}
        s_and_b32 {s_pm}, {s_t3}, %d
        s_lshr_b32 {s_t3}, {s_t3}, %d
        s_lshl_b32 {s_t3}, {s_t3}, %d
        s_or_b32 {s_pm}, {s_pm}, {s_t3}
        s_lshl_b32 {s_t3}, {s_kb}, %d
        s_or_b32 {s_pm}, {s_pm}, {s_t3}
        """ % ((1 << 4 * POS) - 1, 4 * POS, 4 * POS + 4, 4 * POS)))
    else:
        a.ext(X("""
        s_add_u32 {s_t}, {s_kb}, %d
        s_and_b32 {s_t}, {s_t}, 7
        s_lshl_b32 {s_t}, {s_t}, 2
        s_mov_b32 {m0}, 0x76543210
        s_mov_b32 {m1}, 0x76543210
        s_lshr_b64 {s_m}, {s_m}, {s_t}
        s_mov_b32 {s_pm}, {m0}
        """ % (8 - POS), m0=s_m[0], m1=s_m[1]))
    a.ext(X("""
        v_and_b32 {t3}, 1, {t2}
        v_lshlrev_b32 {t3}, 2, {t3}
        v_xor_b32 {t3}, {t1}, {t3}
        v_lshlrev_b32 {t3}, 4, {t3}
        s_lshl_b32 {s_t}, {s_w}, 4
        v_add_u32 {t1}, {s_t}, {t0}
        s_lshr_b32 {s_t}, {s_hg}, 1
        s_lshl_b32 {s_t}, {s_t}, 10
        s_lshl_b32 {s_t2}, {s_ah}, 8
        s_add_u32 {s_t}, {s_t}, {s_t2}
        s_and_b32 {s_t2}, {s_hg}, 1
        s_lshl_b32 {s_t2}, {s_t2}, 7
        s_add_u32 {s_t}, {s_t}, {s_t2}
        v_mul_u32_u24 {t2}, 3072, {t1}
        v_add3_u32 {q0}, {t2}, {t3}, {s_t}
        v_add_u32 {q1}, %d, {q0}
        s_mul_i32 {s_t}, {s_ah}, 896
        s_lshl_b32 {s_t2}, {s_hg}, 7
        s_add_u32 {s_t}, {s_t}, {s_t2}
        v_mul_u32_u24 {t2}, 3584, {t1}
        v_add3_u32 {g0}, {t2}, {t3}, {s_t}
        v_add_u32 {g1}, %d, {g0}
        s_lshr_b32 {s_ct2}, {s_e1}, 2
        s_lshl_b32 {s_t}, {s_ct2}, 7
        v_lshl_add_u32 {d0}, {t0}, 10, {t3}
        v_add_u32 {d0}, {s_t}, {d0}
        v_add_u32 {d1}, 7168, {d0}
        v_lshlrev_b32 {vl16}, 4, {lane}
        s_and_b32 {s_t}, {s_e1}, 3
        s_lshl2_add_u32 {s_rt2}, {s_e0}, {s_t}
        """ % (8 * 3072 - 1024, 8 * 3584 - 1024), q0=voQ[0], q1=voQ[1], g0=voG[0], g1=voG[1], d0=voD[0], d1=voD[1]))
    for srd, n in ((sX, 0x200000), (sQ, 512 * 3072), (sG, 512 * 3584), (sU, 512 * 3584), (sW, WS_SIZE), (sDbg, 256), (sD, 1792 * 1024), (sO, 512 * 1024), (sOut, 0x200000)):
        a("s_mov_b32 %s, %d\ns_mov_b32 %s, 0x00020000", srd[2], n, srd[3])
    def M0(area, adj, nm): return "s_add_u32 m0, %s, %d ; @m0 %s" % (s_w2k, area * AR - adj, nm)
    def LD(vo, srd, so, off, tag, nm): return "buffer_load_dwordx4 %s, %s, %s offen offset:%d lds @use %s ; @vm %s" % (vo, srd, so, off, nm, tag)
    def seg(area, vo, srd, so, off, tag, hdr=[]):
        nm = "%s_%d" % (tag, area)
        return [[M0(area, off, nm)] + hdr + [LD(vo[0], srd, so, off, tag, nm)], [LD(vo[1], srd, so, off + 1024, tag, nm)]]
    def ck(p, dst): return "s_bfe_u32 %s, %s, 0x%x" % (dst, S["pm"], (3 << 16) | (4 * p))
    def dX(p):
        ar = 14 + 2 * (p % 3); tag = "x%d" % p
        w = ["@waitl xr%d" % (p - 3)] if p >= 3 else []
        return [seg(ar, voX, sX, S["xc"], 0, tag, w + [ck(p, S["xc"]), "s_lshl_b32 %s, %s, 7" % (S["xc"], S["xc"])]),
                seg(ar + 1, voX, sX, S["xc"], 0, tag, ["s_add_u32 %s, %s, 16384" % (S["xc"], S["xc"])])]
    def dW(p, O):
        ar = 3 * (p % 4); tag = "d%d" % p
        o = [seg(ar, voQ, sQ, S["qc"], 0, tag, [ck(p, S["gc"]), "s_mul_i32 %s, %s, %d" % (S["qc"], S["gc"], 64 * 3072)])]
        if O: o += [seg(ar + 1, voQ, sQ, S["qc"], 896, tag), seg(ar + 2, voQ, sQ, S["qc"], 1024, tag)]
        else: o += [seg(ar + 1, voG, sG, S["gc"], 0, tag, ["s_mul_i32 %s, %s, %d" % (S["gc"], S["gc"], 64 * 3584)]), seg(ar + 2, voG, sU, S["gc"], 0, tag)]
        return o
    def dP(n):
        off = 384 if n == 8 else 0; tag = "d%d" % n
        return [seg(P2A[n], voG, sG, S["gc"], off, tag, [ck(P2POS[n - 8], S["gc"]), "s_mul_i32 %s, %s, %d" % (S["gc"], S["gc"], 64 * 3584)]),
                seg(P2A[n] + 1, voG, sU, S["gc"], off, tag)]
    def xrd(p): return ["ds_read_b128 %s, %s offset:%d ; @lg xr%d" % (XF(p, s), aX[s], (p % 3) * 2 * AR, p) for s in range(4)]
    def frag(f):
        if f < 192: p, s, nb = f // 24, (f % 24) // 6, f % 6; return p, p, s, nb, 3 * (p % 4) + (nb >> 1)
        g = f - 192; n, s, nb = 8 + g // 16, (g % 16) // 4, g % 4
        return n, P2POS[n - 8], s, nb, P2A[n] + (nb >> 1)
    def wrd(f):
        n, p, s, nb, ar = frag(f); off = ar * AR + s * 2048; hi = off >= 65536
        return ["ds_read_b64_tr_b16 %s, %s offset:%d ; @lg f%d" % (RING[f % 8][2 * j:2 * j + 2], aS[2 * hi + (nb & 1)], off - 65536 * hi + j * 512, f) for j in range(2)]
    W2A = {}
    def dW2(s, area, pre=[]):
        W2A[s] = area; tag = "w%d" % s
        if s < 28:
            h = []
            if s % 4 == 0: h = ["s_bfe_u32 %s, %s, 0x%x" % (S["wg"], S["pg"], (3 << 16) | (s // 4 * 4)), "s_lshl_b32 %s, %s, 16" % (S["wg"], S["wg"]),
                                "s_add_u32 %s, %s, %s" % (S["wg"], S["wg"], S["wd"])]
            else: h = ["s_add_u32 %s, %s, 16384" % (S["wg"], S["wg"])]
            return seg(area, voD, sD, S["wg"], 0, tag, pre + h)
        h = ["s_lshl_b32 %s, %s, 17" % (S["wg"], s_w)] if s == 28 else ["s_add_u32 %s, %s, 16384" % (S["wg"], S["wg"])]
        return seg(area, voD, sO, S["wg"], 0, tag, pre + h)
    PBASE = [14]
    def trd(s):
        dst = WD[s % 16]; off = (W2A[s] - PBASE[0]) * AR; assert 0 <= off < 65536 - 2048, (s, W2A[s], PBASE)
        g = ["ds_read_b64_tr_b16 %s, %s offset:%d ; @lg t%d" % (dst[4 * nb + 2 * j:4 * nb + 2 * j + 2], aP[nb], off + j * 1024, s) for nb in range(2) for j in range(2)]
        g[0] = ["@wait w%d" % s, g[0]]
        return g
    x0 = dX(0)
    a.ext(x0[0][0][:-1])
    a("s_waitcnt lgkmcnt(0)")
    a.ext(flat(x0)[len(x0[0][0]) - 1:])
    a.ext(flat(dW(0, False)[0]))
    a("s_cmp_eq_u32 %s, 3" % S["hg"])
    a("@save br\ns_cbranch_scc1 %s_O", label)
    strow = X("""
        s_lshr_b32 {s_e0}, {s_tok}, 2
        s_lshl_b32 {s_e0}, {s_e0}, 4
        s_add_u32 {s_e0}, {s_e0}, {s_c}
        s_lshl2_add_u32 {s_e0}, {s_e0}, {s_w}
        s_lshl_b32 {s_e0}, {s_e0}, 11
        buffer_load_dwordx4 {r0}, {vl16}, {sX}, {s_e0} offen
        buffer_load_dwordx4 {r1}, {vl16}, {sX}, {s_e0} offen offset:1024
        """, r0=XR[0], r1=XR[1], sX=sX)
    addr = X("""
        v_lshrrev_b32 {t0}, 5, {lane}
        v_bfe_u32 {t1}, {lane}, 2, 2
        v_bfe_u32 {t2}, {lane}, 4, 1
        v_and_b32 {t3}, 3, {lane}
        v_lshlrev_b32 {t3}, 3, {t3}
        v_lshl_add_u32 {t3}, {t2}, 5, {t3}
        v_lshl_add_u32 {t3}, {t0}, 10, {t3}
        v_lshl_add_u32 {t3}, {t1}, 7, {t3}
        v_lshrrev_b32 {t1}, 1, {t1}
        v_lshl_add_u32 {a0}, {t1}, 6, {t3}
        v_xor_b32 {a1}, 64, {a0}
        v_bfe_u32 {t1}, {lane}, 1, 3
        v_xor_b32 {t1}, {t1}, {t0}
        v_and_b32 {t3}, 15, {lane}
        v_lshlrev_b32 {t3}, 7, {t3}
        v_lshl_add_u32 {t3}, {t2}, 13, {t3}
        v_lshl_add_u32 {t3}, {t1}, 4, {t3}
        s_add_u32 {s_t}, {s_w2k}, %d
        v_add_u32 {x0}, {s_t}, {t3}
        v_xor_b32 {x1}, 32, {x0}
        v_xor_b32 {x2}, 64, {x0}
        v_xor_b32 {x3}, 96, {x0}
        v_add_u32 {a2}, 0x10000, {a0}
        v_add_u32 {a3}, 0x10000, {a1}
        s_mov_b32 {s_ones}, 0x3f803f80
        """ % (14 * AR), a0=aS[0], a1=aS[1], a2=aS[2], a3=aS[3], x0=aX[0], x1=aX[1], x2=aX[2], x3=aX[3])
    for O in (False, True):
        tg = "GO"[O]; env["tg"] = tg; PBASE[0] = 14
        if O: a("%s_O:\n@restore br", label)
        base = [2.5 if (i < 185 or i >= 202) and i < NM - 7 else (2.5 if i < 192 else 0.5) for i in range(NM)]
        for n in range(15): base[Bg(n)] += 1.5
        sc = Sch(NM, base)
        init = dW(0, O)[1:]
        rest = [[strow]] + dX(1) + dW(1, O) + dX(2) + dW(2, O) + dP(8)
        npre = opt.get("npre", len(rest))
        xt = []
        if opt.get("xt") is not None:
            xt = [[X("""
                s_lshr_b32 {s_t3}, {s_tok}, 2
                s_lshl2_add_u32 {s_t3}, {s_t3}, {s_hg}
                s_lshl2_add_u32 {s_t3}, {s_t3}, {s_w}
                s_lshl_b32 {s_t3}, {s_t3}, 13
                v_lshlrev_b32 {vF}, 7, {lane}
                buffer_load_dword {vF}, {vF}, {sX}, {s_t3} offen
                """, vF=vF, sX=sX)]]
            rest = rest[:opt["xt"]] + xt + rest[opt["xt"]:]; npre += 1
        pre = flat(init) + flat(rest[:npre]); rest = rest[npre:]
        k = 0; na = opt.get("na", 4)
        seen = 0
        for l in pre:
            a(l)
            if l.startswith("buffer_"):
                seen += 1
                if seen >= na:
                    for _ in range(2):
                        if k < len(addr): a(addr[k]); k += 1
        a.ext(addr[k:])
        a.ext(X("""
            s_lshl_b32 {s_t}, {s_w}, 4
            s_add_u32 {s_t}, {s_t}, s2
            s_cmp_ge_u32 {s_t}, 16
            s_cbranch_scc1 {L}_nn{tg}
            s_memrealtime {s_m}
            s_waitcnt lgkmcnt(0)
            s_mul_i32 {s_t}, {m1}, 0x9e3779b1
            s_xor_b32 {s_t}, {s_t}, {m0}
            s_or_b32 {s_t}, {s_t}, 1
            v_mov_b32 {t0}, {s_t}
            v_mov_b32 {t1}, 0
            s_mov_b64 exec, 1
            buffer_atomic_cmpswap {t01}, off, {sDbg}, 0 sc1 ; @novm
            s_mov_b64 exec, -1
            {L}_nn{tg}:
            """, m0=s_m[0], m1=s_m[1], t01=vv(T[0].b, 2), sDbg=sDbg) if not O else [])
        for r in sq + [CS[0], CS[1], CS[2]]: a("v_mov_b32 %s, 0", r)
        stamp(1)
        a("@wait d0 x0\ns_barrier")
        stamp(2)
        a.ext(xrd(0)[:1])
        for f in range(7):
            a.ext(wrd(f))
            if f in (1, 3, 5): a(xrd(0)[(f + 1) // 2])
        bw = {n: ["d%d" % (n + 1)] for n in range(15)}
        bw[7] = []; bw[PB].append("d8")
        vs = opt.get("vs", 2)
        def sets(g, ls, stride=vs):
            for s_ in ls:
                f_, l_ = sc.dset(g, s_, stride); g = l_ + stride
            return g
        g = sets(0, rest, 1)
        xplan = opt.get("xplan", {"3": -1, "4": 0, "5": 0, "6": 1, "7": 2})
        xread = opt.get("xread", {"1": 0, "2": 0, "3": 1, "4": 2, "5": 2, "6": 3, "7": 4})
        free = {}
        for p in range(1, 8):
            n = xread[str(p)]; assert n <= p - 1
            bw[n].append("x%d" % p)
            e = sc.flow(Bg(n) + 1, xrd(p), cap=4.5)
            if p >= 5: free[14 + 2 * (p % 3)] = free[15 + 2 * (p % 3)] = e + 7
        for p in range(3, 8): assert xplan[str(p)] >= (xread[str(p - 3)] if p > 3 else -1)
        extra = {n: [] for n in range(-1, 16)}
        extra[opt.get("nonb", 0)].append([["buffer_load_dword %s, off, %s, 0 sc1 ; @vm nonce" % (vn, sDbg)]])
        sent = X("""
            s_and_b32 {s_t3}, {s_c}, 12
            s_lshl_b32 {s_t3}, {s_t3}, 1
            s_and_b32 {s_cnt}, {s_c}, 1
            s_lshl2_add_u32 {s_t3}, {s_cnt}, {s_t3}
            s_and_b32 {s_cnt}, {s_c}, 2
            s_add_u32 {s_t3}, {s_t3}, {s_cnt}
            s_mul_i32 {s_cnt}, {s_tok}, 144
            s_add_u32 {s_t3}, {s_t3}, {s_cnt}
            s_lshl_b32 {s_t3}, {s_t3}, 10
            s_add_u32 {s_e1}, {s_t3}, %d
            """ % WS_AF)
        sb = opt.get("sentb", 2)
        sc.flow(Bg(sb) - 12, [["v_mov_b32 %s, -1" % SN[e] for e in range(2)], ["v_mov_b32 %s, -1" % SN[e] for e in range(2, 4)], sent], cap=6)
        extra[sb].append([X("buffer_store_dwordx4 {d}, {vl16}, {sW}, {s_e1} offen {SC}", d=SN), X("buffer_store_dwordx4 {d}, {vl16}, {sW}, {s_e1} offen offset:1024 {SC}", d=SN)])
        if O:
            sc.flow(Bg(sb + 1) - 12, [["v_mov_b32 %s, %s" % (ON[e], S["ones"]) for e in range(2)], ["v_mov_b32 %s, %s" % (ON[e], S["ones"]) for e in range(2, 4)]], cap=6)
            extra[sb + 1].append([X("""
                s_lshl_b32 {s_e1}, {s_tok}, 15
                s_lshl_b32 {s_t3}, {s_c}, 9
                s_add_u32 {s_e1}, {s_e1}, {s_t3}
                s_add_u32 {s_e1}, {s_e1}, %d
                buffer_store_dwordx4 {d}, {vl16}, {sW}, {s_e1} offen {SC}""" % (WS_ON - 3 * 512), d=ON),
                X("buffer_store_dwordx4 {d}, {vl16}, {sW}, {s_e1} offen offset:1024 {SC}", d=ON)])
        gend = {}
        for n in range(-1, 10):
            g = max(g, Bg(n) + 1 if n >= 0 else 8)
            ls = []
            if 0 <= n <= 4: ls += dW(n + 3, O)
            if n == 5:
                sc.add(g, ["v_add_u32 %s, 384, %s" % (r, r) for r in voG]); g += 1
            ls += flat0([dP(k) for k in P2B if P2B[k] == n])
            xs = flat0([dX(p) for p in range(3, 8) if xplan[str(p)] == n])
            g = sets(g, extra[n][:1] if n == opt.get("nonb", 0) else [])
            g = sets(g, ls)
            g = sets(max(g, Bg(n) + 10 if n >= 0 else 8), xs)
            g = sets(g, extra[n][1:] if n == opt.get("nonb", 0) else extra[n])
            gend[n] = g
        st = []
        for i in range(4):
            st += ["v_dot2c_f32_bf16 %s, %s, %s" % (sq[0], S["ones"], XR[0][i]), "v_dot2c_f32_bf16 %s, %s, %s" % (sq[1], XR[0][i], XR[0][i]),
                   "v_dot2c_f32_bf16 %s, %s, %s" % (sq[2], S["ones"], XR[1][i]), "v_dot2c_f32_bf16 %s, %s, %s" % (sq[3], XR[1][i], XR[1][i])]
        st[0] = ["@wait st", st[0]]
        C0 = opt.get("cap0", 6.5)
        e = sc.flow(opt.get("st0", 1), st, cap=5)
        st = ["v_permlane32_swap_b32 %s, %s" % (sq[0], sq[2]), "v_permlane32_swap_b32 %s, %s" % (sq[1], sq[3]),
              ["v_add_f32 %s, %s, %s" % (sq[0], sq[0], sq[2]), "v_add_f32 %s, %s, %s" % (sq[1], sq[1], sq[3])],
              ["v_permlane16_swap_b32 %s, %s" % (sq[0], sq[1]), "v_add_f32 %s, %s, %s" % (sq[0], sq[0], sq[1])]]
        for sh in (8, 4, 2, 1): st.append("v_add_f32_dpp %s, %s, %s row_ror:%d row_mask:0xf bank_mask:0xf" % (sq[0], sq[0], sq[0], sh))
        st[-1] = [st[-1], "v_mov_b32 %s, %s" % (sq[1], sq[0])]
        st += [["v_permlane16_swap_b32 %s, %s" % (sq[0], sq[1]), "v_mul_f32 %s, %s, %s" % (SG[0], fx(-1.0 / 512), sq[0])],
               ["v_mul_f32 %s, %s, %s" % (sq[1], fx(1.0 / 512), sq[1]), "v_fma_f32 %s, -%s, %s, %s" % (sq[1], SG[0], SG[0], sq[1])],
               ["v_max_f32 %s, 0, %s" % (sq[1], sq[1]), "v_add_f32 %s, %s, %s" % (SG[2], fx(1e-5), sq[1])],
               ["v_rsq_f32 %s, %s" % (SG[1], SG[2]), "v_lshrrev_b32 %s, 5, %s" % (sq[2], lane), "v_lshlrev_b32 %s, 4, %s" % (sq[2], sq[2])]]
        e = sc.put(e, st, 1)
        g1 = sc.flow(max(e, opt.get("non1", Bg(1) + 2)), [X("@wait nonce\nv_readfirstlane_b32 {s_nonce}, {vn}"),
                 X("s_cmp_eq_u32 {s_nonce}, 0\ns_cbranch_scc1 {L}_rn{tg}\n{L}_rnr{tg}:\nv_mov_b32 {a}, {s_nonce}\nv_mov_b32 {b}, {s_nonce}", a=SG[3], b=CS[3]),
                 X("""s_lshr_b32 {s_t3}, {s_e0}, 6
                 s_add_u32 {s_t3}, {s_t3}, %d
                 s_mov_b32 exec_lo, 1
                 s_mov_b32 exec_hi, 1
                 buffer_store_dwordx4 {d}, {o}, {sW}, {s_t3} offen {SC}
                 s_mov_b64 exec, -1""" % WS_ST, d=SG, o=sq[2])], cap=5)
        ool.ext(X("""
            {L}_rn{tg}:
            s_mov_b32 {s_cnt}, %d
            {L}_rn{tg}_l:
            buffer_load_dword {vn}, off, {sDbg}, 0 sc1
            s_waitcnt vmcnt(0)
            v_readfirstlane_b32 {s_nonce}, {vn}
            s_cmp_lg_u32 {s_nonce}, 0
            s_cbranch_scc1 {L}_rnr{tg}
            s_sleep 2
            s_sub_u32 {s_cnt}, {s_cnt}, 1
            s_cmp_lg_u32 {s_cnt}, 0
            s_cbranch_scc1 {L}_rn{tg}_l
            s_branch {L}_rnr{tg}
            """ % SPIN, sDbg=sDbg))
        e = sc.flow(2, [X("""s_and_b32 {s_t3}, {s_w}, 1
                s_lshl_b32 {s_t3}, {s_t3}, 6
                v_xor_b32 {c2}, {s_t3}, {a0}""", c2=aC[2], a0=aS[0]),
            X("""s_lshr_b32 {s_cnt}, {s_w}, 1
                s_lshl_b32 {s_t3}, {s_cnt}, 13
                s_add_u32 {s_t3}, {s_t3}, %d
                v_add_u32 {c0}, {s_t3}, {c2}
                s_lshl_b32 {s_t3}, {s_cnt}, 12
                s_add_u32 {s_t3}, {s_t3}, %d
                v_add_u32 {c2}, {s_t3}, {c2}""" % (3 * POS * AR, (3 * POS + 2) * AR), c0=aC[0], c2=aC[2]),
            X("v_add_u32 {c1}, %d, {c0}" % ((12 - 3 * POS) * AR), c0=aC[0], c1=aC[1])], cap=5)
        def crd(k, ad, s, tag): return ["ds_read_b64_tr_b16 %s, %s offset:%d ; @lg %s" % (CFR[k][2 * j:2 * j + 2], ad, s * 2048 + j * 512, tag) for j in range(2)]
        def cdot(dst, k): return ["v_dot2c_f32_bf16 %s, %s, %s" % (dst, S["ones"], CFR[k][i]) for i in range(4)]
        e = sc.flow(max(e, Bg(POS - 1) + 1 if POS else 0, opt.get("cs0", 0)), flat([crd(k, aC[0], k, "ca") for k in range(4)] + [crd(4 + k, aC[2], k, "ca") for k in range(2)]), cap=opt.get("ccap", 6.5))
        assert e + 8 <= Bg(POS + 1), e
        d = merge(flat([cdot(CS[0], k) for k in range(4)]), flat([cdot(CS[2], 4 + k) for k in range(2)])); d[0] = ["@waitl ca", d[0]]
        e = sc.flow(e + 5, d, cap=C0)
        e = sc.flow(max(e, Bg(PB) + 1), flat([crd(k, aC[1], k, "cb") for k in range(4)]), cap=C0)
        d = flat([cdot(CS[1], k) for k in range(4)]); d[0] = ["@waitl cb", d[0]]
        e = sc.flow(e + 5, d, cap=C0)
        def hadd(r3): return [["v_mov_b32 %s, %s" % (CT[i], r3[i]) for i in range(3)], ["v_permlane32_swap_b32 %s, %s" % (r3[i], CT[i]) for i in range(3)],
                              ["v_add_f32 %s, %s, %s" % (r3[i], r3[i], CT[i]) for i in range(3)]]
        e = sc.put(e + 1, hadd(CS), 1)
        e = sc.flow(max(e, g1), [X("""v_and_b32 {t0}, 0x1f0, {vl16}
                {own}
                s_lshl_b32 {s_t3}, {s_t3}, 9
                s_add_u32 {s_t3}, {s_t3}, {s_csb}
                buffer_store_dwordx4 {d}, {t0}, {sW}, {s_t3} offen {SC}""", own=ck(POS, s_t3), d=CS)], cap=5)
        print(tg, "colsum published at", e)
        C = CFR[:4]
        def gloads(tag=" ; @vm g"):
            return [X("""v_and_b32 {t0}, 0x1f0, {vl16}
                    s_lshl_b32 {s_t3}, {s_tok}, 9
                    s_add_u32 {s_t3}, {s_t3}, %d
                    buffer_load_dwordx4 {d}, {t0}, {sW}, {s_t3} offen {SC}%s""" % (WS_ST, tag), d=SL)] + \
                   [X("buffer_load_dwordx4 {d}, {vl16}, {sW}, {s_csb} offen offset:%d {SC}%s" % (1024 * i, tag), d=C[i]) for i in range(4)]
        def gcheck():
            return ["v_xor_b32 %s, %s, %s" % (r, S["nonce"], r) for r in [SL[3]] + [C[i][3] for i in range(4)]] + \
                   ["v_or3_b32 %s, %s, %s, %s" % (SL[3], SL[3], C[0][3], C[1][3]), "v_or3_b32 %s, %s, %s, %s" % (SL[3], SL[3], C[2][3], C[3][3]),
                    "v_cmp_ne_u32 %s, 0, %s" % (s_m, SL[3])]
        GB_ = opt.get("gb", 6)
        sc.flow(max(e, opt.get("gl", Bg(GB_) - 50)), gloads(), cap=5, vgap=2)
        c1 = gcheck(); c1[0] = ["@wait g", c1[0]]
        c1 += [X("s_cmp_lg_u64 {s_m}, 0\ns_cbranch_scc1 {L}_rg{tg}\n{L}_rgr{tg}:")]
        c1 += ["v_add_f32 %s, %s, %s" % (C[i][e_], C[i][e_], C[i + 1][e_]) for i in (0, 2) for e_ in range(3)]
        c1 += ["v_add_f32 %s, %s, %s" % (C[0][e_], C[0][e_], C[2][e_]) for e_ in range(3)]
        e = sc.flow(opt.get("gc", Bg(GB_) - 16), c1, cap=6)
        g_chk = e
        e = sc.put(e, hadd(C[0]) + [X("""v_and_b32 {t0}, 0x1f0, {vl16}
                s_add_u32 {s_t3}, {s_w2k}, %d
                v_add_u32 {t0}, {s_t3}, {t0}
                @waitl tS
                ds_write_b128 {t0}, {d} ; @lg gw""" % (SCRA * AR), d=C[0])], 1)
        assert e <= Bg(GB_), e
        g_scr0 = e - 1
        ool.ext(X("{L}_rg{tg}:\ns_mov_b32 {s_cnt}, %d\n{L}_rg{tg}_l:\ns_sleep 2" % SPIN))
        ool.ext(flat(gloads(""))); ool("s_waitcnt vmcnt(0)"); ool.ext(gcheck())
        ool.ext(X("""s_cmp_eq_u64 {s_m}, 0
            s_cbranch_scc1 {L}_rgr{tg}
            s_sub_u32 {s_cnt}, {s_cnt}, 1
            s_cmp_lg_u32 {s_cnt}, 0
            s_cbranch_scc1 {L}_rg{tg}_l
            s_branch {L}_rgr{tg}"""))
        B = AB[0:6]; mean = SL[0]
        b = [["s_mov_b32 %s, 0" % s_m[0], "s_mov_b32 %s, -1" % s_m[1]],
             "v_cvt_pk_bf16_f32 %s, %s, 0" % (B[1], mean), "v_lshlrev_b32 %s, 16, %s" % (T[2], B[1]), "v_sub_f32 %s, %s, %s" % (T[2], mean, T[2]),
             "v_cvt_pk_bf16_f32 %s, %s, %s" % (B[0], mean, T[2]),
             "v_cndmask_b32 %s, 0, %s, %s" % (B[4], B[0], s_m), "v_cndmask_b32 %s, 0, %s, %s" % (B[5], B[1], s_m),
             "v_cndmask_b32 %s, %s, 0, %s" % (B[0], B[0], s_m), "v_cndmask_b32 %s, %s, 0, %s" % (B[1], B[1], s_m),
             "v_mov_b32 %s, 0" % B[2], "v_mov_b32 %s, 0" % B[3], "v_mov_b32 %s, 0" % AB[16], "v_mov_b32 %s, 0" % AB[17],
             X("s_bitcmp1_b32 {s_c}, 1\ns_cselect_b32 {s_t3}, 1.0, %s\nv_mul_f32 {d}, {s_t3}, {r}" % fx(QSCALE), d=vsc, r=SL[1])]
        if O:
            b += [X("""v_and_b32 {t3}, 31, {lane}
                s_add_u32 {s_t3}, {s_w2k}, %d
                v_lshl_add_u32 {t3}, {t3}, 2, {s_t3}
                ds_write_b32 {t3}, {r}""" % (SCRA * AR + 1024), r=SL[1]),
                X("""v_lshrrev_b32 {t3}, 5, {lane}
                s_add_u32 {s_t3}, {s_w2k}, %d
                v_lshl_add_u32 {t3}, {t3}, 4, {s_t3}""" % (SCRA * AR + 1024))]
        eb = sc.flow(g_chk, b, cap=opt.get("acap", 6))
        bwl = {GB_: ["gw"]}
        R1, R2 = C[1], C[2]
        e = sc.flow(Bg(GB_) + 1, [X("""v_lshrrev_b32 {t0}, 5, {lane}
                v_lshlrev_b32 {t0}, 11, {t0}
                v_and_b32 {t1}, 0x1f0, {vl16}"""), X("""v_add3_u32 {t0}, {t0}, {t1}, {k}
                ds_read_b128 {r1}, {t0}
                ds_read_b128 {r2}, {t0} offset:4096""", r1=R1, r2=R2, k=SG[3])], cap=5)
        sc.add(Bg(GB_) - 3, "v_mov_b32 %s, %d" % (SG[3], SCRA * AR))
        ad = [["@waitl gr", "v_add_f32 %s, %s, %s" % (R1[2], R1[2], R2[2])]]
        for k, src in enumerate((R1[0], R2[0], R1[2], R1[1], R2[1])):
            hi, lo = AB[6 + 2 * k], AB[7 + 2 * k]
            ad += ["v_cvt_pk_bf16_f32 %s, %s, %s" % (hi, src, src), "v_lshlrev_b32 %s, 16, %s" % (T[2], hi),
                   "v_sub_f32 %s, %s, %s" % (T[2], src, T[2]), "v_cvt_pk_bf16_f32 %s, %s, 0" % (lo, T[2])]
        ad += [X("""s_lshl_b32 {s_e1}, {s_tok}, 15
                s_and_b32 {s_t3}, {s_c}, 2
                s_lshl_b32 {s_t3}, {s_t3}, 20
                s_add_u32 {s_e0}, {s_e1}, {s_t3}"""), X("""s_lshr_b32 {s_t3}, {s_c}, 2
                s_lshl_b32 {s_t3}, {s_t3}, 13
                s_add_u32 {s_e0}, {s_e0}, {s_t3}
                s_add_u32 {s_e1}, {s_e1}, {s_t3}"""), X("""s_and_b32 {s_t3}, {s_c}, 1
                s_lshl_b32 {s_t3}, {s_t3}, 12
                s_add_u32 {s_t3}, {s_t3}, %d
                s_add_u32 {s_e0}, {s_e0}, {s_t3}""" % WS_QK)]
        hbase = X("""s_lshr_b32 {s_t3}, {s_c}, 2
                s_mul_i32 {s_t3}, {s_t3}, 3
                s_add_u32 {s_t3}, {s_t3}, {s_c}
                s_mul_i32 {s_e1}, {s_tok}, 36
                s_add_u32 {s_e1}, {s_e1}, {s_t3}
                s_lshl_b32 {s_e1}, {s_e1}, 12
                s_add_u32 {s_e1}, {s_e1}, %d""" % (WS_AF + 32 * 1024))
        ad += [X("s_add_u32 {s_e1}, {s_e1}, %d" % WS_V)] if O else [hbase]
        e = sc.flow(max(e, eb), ad, cap=opt.get("acap", 6)); assert e <= 191, e
        print(tg, "corr operands ready at", e)
        def blk(G_, mul, so, off):
            g_ = []
            for hf in range(2):
                g_ += ["v_mul_f32 %s, %s, %s" % (G_[i], G_[i], mul(i)) for i in range(8 * hf, 8 * hf + 8)]
                g_ += ["v_cvt_pk_bf16_f32 %s, %s, %s" % (G_[8 * hf + i], G_[8 * hf + 2 * i], G_[8 * hf + 2 * i + 1]) for i in range(4)]
                g_ += ["buffer_store_dwordx4 %s, %s, %s, %s offen offset:%d %s ; @vm es" % (G_[8 * hf:8 * hf + 4], vl16, sW, so, off + hf * 1024, SC)]
            return g_
        ep = blk(A1[0], lambda i: vsc, S["e0"], 0) + blk(A1[1], lambda i: vsc, S["e0"], 2048)
        ecap = opt.get("ecap", 7)
        e = sc.flow(195, ep, cap=ecap)
        if O:
            sc.put(202, ["ds_read_b128 %s, %s offset:%d ; @lg rs" % (RS[4 * k:4 * k + 4], T[3], 32 * k) for k in range(4)], 2)
            ep = []
            for nb in range(4):
                if nb == 2: ep.append("s_add_u32 %s, %s, 4096" % (S["e1"], S["e1"]))
                ep += blk(A1[2 + nb], lambda i: RS[i], S["e1"], (nb & 1) * 2048)
            ep[0] = ["@waitl rs", ep[0]]
            e = sc.flow(max(e, 207), ep + [hbase], cap=ecap)
        else:
            e = sc.flow(e, blk(A1[2], lambda i: A1[4][i], S["e1"], 0) + blk(A1[3], lambda i: A1[5][i], S["e1"], 2048), cap=ecap)
        g_ep = e
        def flag(kind, tag):
            return X("""@wait %s
                s_lshl_b32 {s_t3}, {s_tok}, 4
                s_add_u32 {s_t3}, {s_t3}, {s_c}
                s_lshl_b32 {s_t3}, {s_t3}, 2
                s_add_u32 {s_t3}, {s_t3}, %d
                s_mov_b64 exec, 1
                buffer_store_dword {vn}, off, {sW}, {s_t3} {SC}
                s_mov_b64 exec, -1""" % (tag, WS_FL + kind * 8192 + 512))
        e = sc.flow(g_ep + opt.get("flat", 40), [flag(0, "es")], cap=5)
        print(tg, "epilogue1 end", g_ep, "flag at", e)
        import importlib
        P2 = importlib.import_module(opt.get("p2", "g4"))
        P2.during(sc, O, opt, locals())
        if opt.get("rep"): sc.report()
        assert not sc.over or opt.get("over", 1)
        def corr(k):
            e_, b_ = k >> 1, k & 1
            A_ = AB[6 + 2 * e_:10 + 2 * e_] if b_ == 0 else AB[4 + 2 * e_:8 + 2 * e_]
            B_ = AB[0:4] if b_ == 0 else AB[2:6]
            if O and 2 <= k < 6: A_, B_ = B_, A_
            D_ = A1[k] if k < 6 else A2[k - 6]
            return "%s %s, %s, %s, %s" % (MF, D_, A_, B_, D_ if k < 6 else "0")
        bar = {Bg(n): n for n in range(15)}
        stm = opt.get("stm", {"48": 3, "96": 4, "192": 5, "266": 6})
        for i in range(NM):
            if str(i) in stm: stamp(stm[str(i)])
            if 192 <= i < 202: a(corr(i - 192)); f = None
            else:
                f = i if i < 192 else i - 10
                n, p, s, nb, ar = frag(f)
                if f % 2 == 0: a("@waitl f%d f%d xr%d", f, f + 1, p)
                A_, B_ = RING[f % 8], XF(p, s)
                if O and f < 192 and nb >= 2: A_, B_ = B_, A_
                D_ = A1[nb] if f < 192 else A2[nb]
                a("%s %s, %s, %s, %s", MF, D_, A_, B_, "0" if f < 6 else str(D_))
                if f + 7 < 320: a.ext(wrd(f + 7))
            for gr in sc.fill[i]: a.ext(gr)
            if i in bar:
                n = bar[i]
                if bw[n]: a("@wait " + " ".join(bw[n]))
                if n in bwl: a("@waitl " + " ".join(bwl[n]))
                a("s_barrier")
        stamp(7)
        for _, _, gr in sorted(sc.over): a.ext(gr)
        if not O: a("@save pg\ns_branch %s_p2", label)
    a("%s_p2:\n@merge pg", label)
    P2.phase2(a, ool, label, opt, locals())
    a("%s_end:\ns_endpgm", label)
    lines = []
    for l in a.L: lines += l.split("\n")
    a0.L += sch.fixhz(sch.resolve(lines), opt.get("hzv")) + sch.fixhz(ool.L)
    return dict(vgpr=512, accum=256, lds=163840)

def flat0(l):
    o = []
    for x in l: o += x
    return o
```

```python
from asmlib import *
import sch, sch2, struct, re
from sch2 import Sch, G
def f2u(f): return struct.unpack("<I", struct.pack("<f", f))[0]
def fx(f): return "0x%08x" % f2u(f)
MF = "v_mfma_f32_32x32x16_bf16"
MB = 1 << 20
WS_QK = 1 * MB
WS_V  = 5 * MB
WS_AF = 9 * MB
WS_CS = 18 * MB
WS_ST = WS_CS + (512 << 10)
WS_FL = 19 * MB
WS_SIZE = 20 * MB
QSCALE = 0.25 * 1.4426950408889634
NEG = "0xf149f2ca"
ONE2 = "0x3f803f80"
SPIN = 1 << 14
SC = "sc1"
def F(n): return 24 * n if n <= 8 else 192 + 16 * (n - 8)
def WST(p): return 24576 * (p % 4)
def PA(k): return 16384 * k
PO = PA(6)
def XST(p): return PA(7 + p % 3)
P2O = {8: PO, 9: PA(0), 10: PA(1), 11: PA(2), 12: PA(3), 13: PA(4), 14: PA(5), 15: PO}
P2B = {9: 5, 10: 6, 11: 6, 12: 7, 13: 8, 14: 8, 15: 9}
SCR = PA(9)
def flat(l):
    o = []
    for x in l: o += flat(x) if isinstance(x, (list, tuple)) else [x]
    return o
def flat0(l):
    o = []
    for x in l: o += x
    return o
def vv(b, n=1): return R("v", b, n)
def aa(b, n=1): return R("a", b, n)
def ss(b, n=1): return R("s", b, n)

def gen(a0, label, opt):
    a = Asm(); ool = Asm()
    sch2.CV.update(opt.get("cv", {}))
    POS = opt.get("pos", 1); PB = opt.get("pb", POS)
    P2POS = [POS] + [p for p in range(8) if p != POS]
    RANK = {p: k for k, p in enumerate(P2POS)}
    csa = opt.get("csa", 24 * POS + 10); csb_ = opt.get("csb", 24 * PB + 32)
    ins = {csa + 2 * k: k for k in range(6)}; ins.update({csb_ + 2 * k: 6 + k for k in range(4)})
    assert csb_ >= csa + 20
    seq = []; pos = {}; cpos = {}
    for f in range(320):
        if f == 192:
            kpos = len(seq); seq += [("k", k) for k in range(10)]
        pos[f] = len(seq); seq.append(("f", f))
        if f in ins: cpos[ins[f]] = len(seq); seq.append(("c", ins[f]))
    NM = len(seq)
    def Bg(n): return pos[F(n + 1) - 8]
    voXr = vv(0); lane = vv(1); vl16 = vv(2); voQ = [vv(3), vv(4)]; voG = [vv(5), vv(6)]; voX = [vv(7), vv(8)]; voD = [vv(9), vv(10), vv(7), vv(8)]
    aS = [vv(11), vv(12), vv(13), vv(14)]; aX = [vv(15 + i) for i in range(4)]; aP = [vv(19), vv(20)]; vn = vv(21)
    T = [vv(22 + i) for i in range(4)]
    voK, voV, vP, vF = vv(26), vv(27), vv(28), vv(29); voA = [vv(30), vv(31)]; vsc = vF
    AB = vv(32, 18); RS = vv(32, 16); CF = vv(32, 16); CL = vv(48, 16)
    RING = [vv(64 + 4 * i, 4) for i in range(8)]
    A1 = [vv(96 + 16 * i, 16) for i in range(6)]; A2 = [vv(192 + 16 * i, 16) for i in range(4)]
    def XF(p, s): return aa(16 * RANK[p] + 4 * s, 4)
    WD = [aa(128 + 8 * s, 8) for s in range(16)]
    CA = [aa(128 + 16 * i, 16) for i in range(3)]
    CFR = [vv(192 + 4 * i, 4) for i in range(6)]; XR = [CFR[0], CFR[1]]; sq = [CFR[2][i] for i in range(4)]
    SG = vv(216, 4); SN = vv(220, 4); ON = vv(224, 4); CS = vv(228, 4); SL = vv(232, 4)
    aC = [vv(236 + i) for i in range(3)]; CT = [vv(239 + i) for i in range(3)]
    v16m, aGW, aGR, voSt, aRW = [vv(242 + i) for i in range(5)]; aRR = T[3]
    sX, sG, sU, sQ, sW, sD, sO, sOut, sDbg = [ss(4 + 4 * i, 4) for i in range(9)]
    names = "w w2k w4k pm pg nonce xc qc gc wg asn astp acsp csb astg e0 e1 eh afl wd fl kvb ah ao os xo st lim rt2 hg t t2 cnt tok c ct2".split()
    S = {n: ss(40 + i) for i, n in enumerate(names)}; S["t3"] = ss(3)
    assert 40 + len(names) <= 76
    for k_, v_ in (("x8", "hg"), ("j", "lim"), ("own", "wg"), ("q", "nonce"), ("ti", "cnt"), ("one", "qc")): S[k_] = S[v_]
    s_m = ss(76, 2); s_need = ss(78, 2)
    s_w, s_w2k, s_w4k, s_t, s_t2, s_t3, s_cnt = S["w"], S["w2k"], S["w4k"], S["t"], S["t2"], S["t3"], S["cnt"]
    tl = Timeline(a, opt.get("tl"), 0, 80, nmax=11)
    STL = ["S"] + [str(x) for x in opt.get("st", ["B", 202, "E", "A0", "A1", "k112"])]; assert len(STL) <= 10
    SE = len(STL)
    def stamp(n, emit=True):
        if not tl.on or str(n) not in STL: return None
        tl.n = STL.index(str(n))
        return tl.stamp(emit)
    class D(dict):
        def __missing__(s, k): raise KeyError(k)
    env = D({("s_" + k): str(v) for k, v in S.items()})
    env.update(lane=lane, vl16=vl16, t0=T[0], t1=T[1], t2=T[2], t3=T[3], L=label, sW=sW, SC=SC, s_m=s_m, vn=vn, m0=s_m[0], m1=s_m[1],
               n0=s_need[0], n1=s_need[1], sDbg=sDbg, sX=sX, ONE2=ONE2, NEG=NEG)
    def X(txt, **kw):
        e = D(env); e.update(kw)
        return [l.strip() for l in txt.format_map(e).split("\n") if l.strip()]
    ORD = opt.get("ord", 0)
    if ORD == 0:
        PM = "\n".join(X("""
        s_lshl_b32 {s_t}, {s_own}, 2
        s_bfm_b32 {s_t2}, {s_t}, 0
        s_and_b32 {s_t3}, {s_t2}, 0x76543210
        s_andn2_b32 {s_t2}, 0x07654321, {s_t2}
        s_or_b32 {s_t3}, {s_t3}, {s_t2}
        s_and_b32 {s_pm}, {s_t3}, %d
        s_lshr_b32 {s_t3}, {s_t3}, %d
        s_lshl_b32 {s_t3}, {s_t3}, %d
        s_or_b32 {s_pm}, {s_pm}, {s_t3}
        s_lshl_b32 {s_t3}, {s_own}, %d
        s_or_b32 {s_pm}, {s_pm}, {s_t3}
        """ % ((1 << 4 * POS) - 1, 4 * POS, 4 * POS + 4, 4 * POS)))
    else:
        PM = "\n".join(X("""
        s_mul_i32 {s_t}, {s_ti}, %d
        s_add_u32 {s_t}, {s_t}, {s_own}
        s_and_b32 {s_t}, {s_t}, 7
        s_lshl_b32 {s_t}, {s_t}, 2
        s_mov_b32 {m0}, 0x76543210
        s_mov_b32 {m1}, 0x76543210
        s_lshr_b64 {s_m}, {s_m}, {s_t}
        s_mov_b32 {s_pm}, {m0}
        """ % (ORD - 1)))
    a("%s:", label)
    stamp("S")
    a("s_cmp_ge_u32 s2, 256\ns_cbranch_scc1 %s_end", label)
    for srd, off in ((sX, 0), (sQ, 8), (sG, 32), (sU, 40), (sW, 72), (sDbg, 64), (sD, 48), (sO, 16), (sOut, 56)):
        a("s_load_dwordx2 %s, s[0:1], %d", srd[0:2], off)
    a.ext(X("""
        v_lshrrev_b32 {t0}, 6, v0
        v_and_b32 {lane}, 63, v0
        s_and_b32 {s_x8}, s2, 7
        s_lshr_b32 {s_j}, s2, 3
        v_readfirstlane_b32 {s_w}, {t0}
        s_and_b32 {s_own}, {s_j}, 7
        s_lshr_b32 {s_q}, {s_x8}, 1
        s_lshr_b32 {s_ti}, {s_j}, 3
        v_lshrrev_b32 {t0}, 3, {lane}
        v_and_b32 {t1}, 7, {lane}
        v_lshrrev_b32 {t2}, 4, {lane}
        s_and_b32 {s_t}, {s_x8}, 1
        s_lshl3_add_u32 {s_t}, {s_t}, {s_own}
        s_lshl2_add_u32 {s_tok}, {s_t}, {s_w}
        s_lshl2_add_u32 {s_c}, {s_q}, {s_ti}
        s_lshl_b32 {s_w2k}, {s_w}, 11
        s_lshl_b32 {s_w4k}, {s_w}, 12
        s_lshl4_add_u32 {s_astp}, {s_t}, {s_c}
        s_lshl_b32 {s_astp}, {s_astp}, 13
        s_add_u32 {s_astp}, {s_astp}, {s_w2k}
        v_lshlrev_b32 {vl16}, 4, {lane}
        v_xor_b32 {t3}, {t1}, {t2}
        v_lshlrev_b32 {t3}, 4, {t3}
        v_lshl_add_u32 {x0}, {t0}, 10, {t3}
        s_lshl_b32 {s_t}, {s_tok}, 15
        v_add_u32 {x0}, {s_t}, {x0}
        v_xor_b32 {x1}, 64, {x0}
        v_add_u32 {x1}, 7168, {x1}
        {PM}
        v_and_b32 {t3}, 1, {t2}
        v_lshlrev_b32 {t3}, 2, {t3}
        v_xor_b32 {t3}, {t1}, {t3}
        v_lshlrev_b32 {t3}, 4, {t3}
        s_lshl_b32 {s_t}, {s_w}, 4
        v_add_u32 {t1}, {s_t}, {t0}
        s_lshr_b32 {s_t}, {s_ti}, 1
        s_lshl_b32 {s_t}, {s_t}, 10
        s_lshl_b32 {s_t2}, {s_q}, 8
        s_add_u32 {s_t}, {s_t}, {s_t2}
        s_and_b32 {s_t2}, {s_ti}, 1
        s_lshl_b32 {s_t2}, {s_t2}, 7
        s_add_u32 {s_t}, {s_t}, {s_t2}
        v_mul_u32_u24 {t2}, 3072, {t1}
        v_add3_u32 {q0}, {t2}, {t3}, {s_t}
        v_add_u32 {q1}, %d, {q0}
        s_mul_i32 {s_t}, {s_q}, 896
        s_lshl_b32 {s_t2}, {s_ti}, 7
        s_add_u32 {s_t}, {s_t}, {s_t2}
        v_mul_u32_u24 {t2}, 3584, {t1}
        v_add3_u32 {g0}, {t2}, {t3}, {s_t}
        v_add_u32 {g1}, %d, {g0}
        s_lshr_b32 {s_ct2}, {s_j}, 2
        s_lshl_b32 {s_t}, {s_ct2}, 7
        v_lshl_add_u32 {d0}, {t0}, 10, {t3}
        v_add_u32 {d0}, {s_t}, {d0}
        v_add_u32 {d1}, 7168, {d0}
        """ % (8 * 3072 - 1024, 8 * 3584 - 1024), PM=PM,
        x0=voX[0], x1=voX[1], q0=voQ[0], q1=voQ[1], g0=voG[0], g1=voG[1], d0=voD[0], d1=voD[1]))
    for srd, n in ((sX, 0x200000), (sQ, 512 * 3072), (sG, 512 * 3584), (sU, 512 * 3584 + 2048), (sW, WS_SIZE), (sDbg, 256), (sD, 1792 * 1024), (sO, 512 * 1024), (sOut, 0x200000)):
        a("s_mov_b32 %s, %d\ns_mov_b32 %s, 0x00020000", srd[2], n, srd[3])
    def M0(base, off, nm): return "s_add_u32 m0, %s, %d ; @m0 %s" % (base, off, nm)
    def LD(vo, srd, so, off, tag, nm): return "buffer_load_dwordx4 %s, %s, %s offen offset:%d lds @use %s ; @vm %s" % (vo, srd, so, off, nm, tag)
    def ck(p, dst): return "s_bfe_u32 %s, %s, 0x%x" % (dst, S["pm"], (3 << 16) | (4 * p))
    def dX(p):
        tag = "x%d" % p; xc = S["xc"]
        w = ["@waitl xr%d" % (p - 3)] if p >= 3 else []
        return [([M0(s_w4k, XST(p), tag), ck(p, xc), "s_lshl_b32 %s, %s, 7" % (xc, xc)],
                 [w + [LD(voX[0], sX, xc, 0, tag, tag)], [LD(voX[1], sX, xc, 1024, tag, tag), "s_add_u32 %s, %s, 14336" % (xc, xc)],
                  LD(voX[0], sX, xc, 2048, tag, tag), LD(voX[1], sX, xc, 3072, tag, tag)])]
    def GUp(off, tag, nm): return [LD(voG[i & 1], (sG, sU)[i >> 1], S["gc"], off + 1024 * i, tag, nm) for i in range(4)]
    def dW(p, O):
        tag = "d%d" % p; qc, gc = S["qc"], S["gc"]
        o = [([M0(s_w2k, WST(p), tag + "q"), ck(p, gc), "s_mul_i32 %s, %s, %d" % (qc, gc, 64 * 3072)], [LD(voQ[i], sQ, qc, 1024 * i, tag, tag + "q") for i in range(2)])]
        if O:
            for k, off in ((0, 896), (1, 1024)):
                nm = tag + "v%d" % k
                o.append(([M0(s_w4k, WST(p) + 8192 + 2048 * k - off, nm)], [LD(voQ[i], sQ, qc, off + 1024 * i, tag, nm) for i in range(2)]))
        else: o.append(([M0(s_w4k, WST(p) + 8192, tag + "g"), "s_mul_i32 %s, %s, %d" % (gc, gc, 64 * 3584)], GUp(0, tag, tag + "g")))
        return o
    def dP(n):
        off = 384 if n == 8 else 0; tag = "d%d" % n; gc = S["gc"]
        return [([M0(s_w4k, P2O[n] - off, tag), ck(P2POS[n - 8], gc), "s_mul_i32 %s, %s, %d" % (gc, gc, 64 * 3584)], GUp(off, tag, tag))]
    def xrd(p): return ["ds_read_b128 %s, %s offset:%d ; @lg xr%d" % (XF(p, s), aX[s], XST(p) - XST(0), p) for s in range(4)]
    def frag(f):
        if f < 192:
            p, s, nb = f // 24, (f % 24) // 6, f % 6
            return p, p, s, nb, WST(p) + (s * 2048 if nb < 2 else 8192 + s * 4096 + (nb >> 2) * 2048)
        g = f - 192; n, s, nb = 8 + g // 16, (g % 16) // 4, g % 4
        if n == 15 and opt.get("bm", 1): s, nb = (g % 8) // 2, ((g % 16) // 8) + 2 * (g % 2)
        return n, P2POS[n - 8], s, nb, P2O[n] + s * 4096 + (nb >> 1) * 2048
    def wrd(f):
        n, p, s, nb, off = frag(f); hi = off >= 65536
        return ["ds_read_b64_tr_b16 %s, %s offset:%d ; @lg f%d" % (RING[f % 8][2 * j:2 * j + 2], aS[2 * hi + (nb & 1)], off - 65536 * hi + j * 512, f) for j in range(2)]
    W2A = {}
    def dW2(k, area, pre=[]):
        W2A[k] = area; tag = "w%d" % k; wg = S["wg"]
        if k == 14: h = ["s_lshl_b32 %s, %s, 17" % (wg, s_w)]
        elif k % 2 == 0 and k < 14: h = ["s_bfe_u32 %s, %s, 0x%x" % (wg, S["pg"], (3 << 16) | (k * 2)), "s_lshl_b32 %s, %s, 16" % (wg, wg), "s_add_u32 %s, %s, %s" % (wg, wg, S["wd"])]
        else: h = ["s_add_u32 %s, %s, 32768" % (wg, wg)]
        p_ = [LD(voD[i], sD if k < 14 else sO, wg, 1024 * i, tag, tag) for i in range(4)]
        p_[0] = pre + [p_[0]]
        return ([M0(s_w4k, PA(area), tag)] + h, p_)
    aQ = voQ
    def trd(s):
        dst = WD[s % 16]; ar = W2A[s >> 1]; ad = aP if ar >= 7 else aQ; off = PA(ar % 7) + (s & 1) * 2048; assert 0 <= off < 65536 - 2048, (s, W2A)
        g = ["ds_read_b64_tr_b16 %s, %s offset:%d ; @lg t%d" % (dst[4 * nb + 2 * j:4 * nb + 2 * j + 2], ad[nb], off + j * 1024, s) for nb in range(2) for j in range(2)]
        g[0] = ["@wait w%d" % (s >> 1), g[0]]
        return g
    x0 = dX(0)[0]
    a.ext(x0[0])
    a("s_waitcnt lgkmcnt(0)")
    strow = X("""buffer_load_dwordx4 {r0}, {vl16}, {sX}, {s_astp} offen
        buffer_load_dwordx4 {r1}, {vl16}, {sX}, {s_astp} offen offset:1024""", r0=XR[0], r1=XR[1])
    if opt.get("stf", 1): a.ext(strow)
    a.ext(flat(x0[1]))
    a("s_sub_u32 %s, %s, 2048\ns_subb_u32 %s, %s, 0", sU[0], sU[0], sU[1], sU[1])
    a.ext(flat(dW(0, False)[0]))
    a("s_cmp_eq_u32 %s, 3" % S["ti"])
    a("@save br\ns_cbranch_scc1 %s_O", label)
    import importlib
    P2 = importlib.import_module(opt.get("p2", "g6"))
    from g5pre import pre_code
    addr, pre2, stats = pre_code(locals())
    for O in (False, True):
        tg = "GO"[O]; env["tg"] = tg
        if O: a("%s_O:\n@restore br", label)
        base = []
        for kind, f in seq: base.append(8 + (8 if kind == "f" and f + 7 < 320 else 0) + (4 if kind == "f" and f % 2 == 0 else 0))
        for n in range(15): base[Bg(n)] += 8
        sc = Sch(NM, base, opt.get("vs", 2))
        init = dW(0, O)[1:]
        rest = dX(1) + dW(1, O) + dP(8) + dX(2) + dW(2, O)
        npre = opt.get("npre", 3)
        if O and npre >= 3: npre += 1
        if O and npre >= 8: npre += 1
        pre = flat(init) + ([] if opt.get("stf", 1) else strow) + flat(rest[:npre]); rest = rest[npre:]
        nonce = X("""
            s_lshl_b32 {s_t}, {s_w}, 4
            s_add_u32 {s_t}, {s_t}, s2
            s_cmp_ge_u32 {s_t}, 16
            s_cbranch_scc1 {L}_nn{tg}
            s_memrealtime {s_m}
            s_waitcnt lgkmcnt(0)
            s_mul_i32 {s_t}, {m1}, 0x9e3779b1
            s_xor_b32 {s_t}, {s_t}, {m0}
            s_or_b32 {s_t}, {s_t}, 1
            v_mov_b32 {c0}, {s_t}
            v_mov_b32 {c1}, 0
            s_mov_b64 exec, 1
            buffer_atomic_cmpswap {c01}, off, {sDbg}, 0 sc1 ; @novm
            s_mov_b64 exec, -1
            {L}_nn{tg}:
            """, c0=CS[0], c1=CS[1], c01=CS[0:2]) if not O else []
        k = 0; na = opt.get("na", 4); seen = 0; body = addr + pre2
        for l in pre:
            a(l)
            if l.startswith("buffer_"):
                seen += 1
                if seen == 4: a.ext(nonce)
                if seen >= na:
                    for _ in range(opt.get("nb", 3)):
                        if k < len(body): a(body[k]); k += 1
        a.ext(body[k:])
        a.ext(stats)
        stamp("P")
        a("@wait d0 x0\ns_barrier")
        stamp("B")
        a.ext(xrd(0)[:1])
        for f in range(7):
            a.ext(wrd(f))
            if f in (1, 3, 5): a(xrd(0)[(f + 1) // 2])
        bw = {n: ["d%d" % (n + 1)] for n in range(15)}
        bw[7] = []; bw[PB].append("d8")
        CAP = opt.get("cap", 32)
        def sets(g, ls, vs=None):
            for h_, p_ in ls:
                f_, l_ = sc.dset(g, h_, p_, vs); g = l_
            return g
        xplan = opt.get("xplan", {"3": 0, "4": 1, "5": 2, "6": 3, "7": 4})
        xread = opt.get("xread", {"1": 0, "2": 1, "3": 2, "4": 3, "5": 4, "6": 5, "7": 6})
        free = {}; xre = {0: 0}
        for p in range(1, 8):
            n = xread[str(p)]; assert n <= p - 1
            bw[n].append("x%d" % p)
            e = sc.flow(Bg(n) + 1, xrd(p), cap=30); xre[p] = e
            assert e + 2 <= pos[24 * p], (p, e)
            if p >= 5: free[7 + p % 3] = e + 4
        def crd(k, ad, off, tag): return ["ds_read_b64_tr_b16 %s, %s offset:%d ; @lg %s" % (CFR[k][2 * j:2 * j + 2], ad, off + j * 512, tag) for j in range(2)]
        e = sc.flow(Bg(POS - 1) + 1 if POS else 0, flat([crd(k, aC[0], k * 4096, "c%d" % k) for k in range(4)] + [crd(4 + k, aC[2], k * 2048, "c%d" % (4 + k)) for k in range(2)]), cap=28)
        assert e + 3 <= cpos[0] and cpos[5] < Bg(POS + 1), (e, cpos)
        e = sc.flow(max(Bg(PB) + 1, cpos[3]), flat([crd(k, aC[1], k * 4096, "c%d" % (6 + k)) for k in range(4)]), cap=28)
        assert e + 3 <= cpos[6], (e, cpos)
        g = sets(0, rest, opt.get("vs0", 2))
        for p in range(3, 8): assert xplan[str(p)] >= (xread[str(p - 3)] if p > 3 else -1)
        nb_ = opt.get("nonb", 0); sb = opt.get("sentb", 3)
        gend = {}
        for n in range(-1, 10):
            g0 = Bg(n) + 1 if n >= 0 else 8
            if n == nb_: sc.flow(g0, [X("buffer_load_dword {vn}, off, {sDbg}, 0 sc1")])
            g = max(g, g0)
            ls = []
            if 0 <= n <= 4: ls += dW(n + 3, O)
            if n == 5:
                sc.add(g, ["v_add_u32 %s, 384, %s" % (r, r) for r in voG]); g += 1
            ls += flat0([dP(k) for k in P2B if P2B[k] == n])
            g = sets(g, ls); gw = g
            for p in range(3, 8):
                if xplan[str(p)] == n: g = sets(max(g, xre[p - 3] + 3), dX(p)); gx = g
            if n == sb: g = sc.flow(g, X("buffer_store_dwordx4 {d}, {vl16}, {sW}, {s_asn} offen {SC}\nbuffer_store_dwordx4 {d}, {vl16}, {sW}, {s_asn} offen offset:1024 {SC}", d=SN), cap=40)
            gend[n] = (gw, g)
            assert n < 0 or n > 6 or gw <= Bg(n + 2) - 8, (n, g)
        g_vd = sc.flow(gx + 1, ["v_add_u32 %s, 14336, %s" % (voD[2 + i], voD[i]) for i in range(2)])
        P2.early(sc, O, opt, locals())
        g1 = sc.flow(opt.get("non1", Bg(1) + 2), [X("@wait nonce\nv_readfirstlane_b32 {s_nonce}, {vn}"),
                 X("s_cmp_eq_u32 {s_nonce}, 0\ns_cbranch_scc1 {L}_rn{tg}\n{L}_rnr{tg}:"), X("v_mov_b32 {a}, {vn}\nv_mov_b32 {b}, {vn}", a=SG[3], b=CS[3]),
                 X("""s_mov_b32 exec_lo, 1
                 s_mov_b32 exec_hi, 1
                 buffer_store_dwordx4 {d}, {o}, {sW}, {s_astp} offen {SC}
                 s_mov_b64 exec, -1""", d=SG, o=voSt)], cap=36, vs=1)
        ool.ext(X("""
            {L}_rn{tg}:
            s_mov_b32 {s_cnt}, %d
            {L}_rn{tg}_l:
            buffer_load_dword {vn}, off, {sDbg}, 0 sc1
            s_waitcnt vmcnt(0)
            v_readfirstlane_b32 {s_nonce}, {vn}
            s_cmp_lg_u32 {s_nonce}, 0
            s_cbranch_scc1 {L}_rnr{tg}
            s_sleep 2
            s_sub_u32 {s_cnt}, {s_cnt}, 1
            s_cmp_lg_u32 {s_cnt}, 0
            s_cbranch_scc1 {L}_rn{tg}_l
            s_branch {L}_rnr{tg}
            """ % SPIN))
        e = sc.flow(cpos[9] + 3, ["v_accvgpr_read_b32 %s, %s" % (CS[i], CA[i][0]) for i in range(3)], cap=36); g_ca = e
        e = sc.flow(max(e, g1), [X("buffer_store_dwordx4 {d}, {o}, {sW}, {s_acsp} offen {SC}", d=CS, o=v16m)], cap=40, vs=1)
        print(tg, "stats published at", g1, "colsum at", e, "gend", gend, "Bg", [Bg(n) for n in range(15)])
        C = CFR[:4]
        def gloads(tag=" ; @vm g"):
            return [X("buffer_load_dwordx4 {d}, {o}, {sW}, {s_astg} offen {SC}%s" % tag, d=SL, o=v16m)] + \
                   [X("buffer_load_dwordx4 {d}, {vl16}, {sW}, {s_csb} offen offset:%d {SC}%s" % (1024 * i, tag), d=C[i]) for i in range(4)]
        def gcheck():
            return ["v_xor_b32 %s, %s, %s" % (r, S["nonce"], r) for r in [SL[3]] + [C[i][3] for i in range(4)]] + \
                   ["v_or3_b32 %s, %s, %s, %s" % (SL[3], SL[3], C[0][3], C[1][3]), "v_or3_b32 %s, %s, %s, %s" % (SL[3], SL[3], C[2][3], C[3][3]),
                    "v_cmp_ne_u32 %s, 0, %s" % (s_m, SL[3])]
        GB_ = opt.get("gb", 6)
        g_gl = sc.flow(max(e, Bg(GB_) - opt.get("gl", 46)), gloads(), cap=36, vs=1)
        c1 = gcheck(); c1[0] = ["@wait g", c1[0]]
        c1 += [X("s_cmp_lg_u64 {s_m}, 0\ns_cbranch_scc1 {L}_rg{tg}\n{L}_rgr{tg}:")]
        e = sc.flow(Bg(GB_) - opt.get("gc", 16), c1, cap=36); g_chk = e
        c1 = ["v_add_f32 %s, %s, %s" % (C[i][e_], C[i][e_], C[i + 1][e_]) for i in (0, 2) for e_ in range(3)]
        c1 += ["v_add_f32 %s, %s, %s" % (C[0][e_], C[0][e_], C[2][e_]) for e_ in range(3)]
        c1 += ["v_mov_b32 %s, %s" % (CT[i], C[0][i]) for i in range(3)] + ["v_permlane32_swap_b32 %s, %s" % (C[0][i], CT[i]) for i in range(3)]
        c1 += ["v_add_f32 %s, %s, %s" % (C[0][i], C[0][i], CT[i]) for i in range(3)] + ["ds_write_b128 %s, %s ; @lg gw" % (aGW, C[0])]
        e = sc.flow(e - 1, c1, cap=36)
        assert e <= Bg(GB_), e
        ool.ext(X("{L}_rg{tg}:\ns_mov_b32 {s_cnt}, %d\n{L}_rg{tg}_l:\ns_sleep 2" % SPIN))
        ool.ext(flat(gloads(""))); ool("s_waitcnt vmcnt(0)"); ool.ext(gcheck())
        ool.ext(X("""s_cmp_eq_u64 {s_m}, 0
            s_cbranch_scc1 {L}_rgr{tg}
            s_sub_u32 {s_cnt}, {s_cnt}, 1
            s_cmp_lg_u32 {s_cnt}, 0
            s_cbranch_scc1 {L}_rg{tg}_l
            s_branch {L}_rgr{tg}"""))
        bwl = {GB_: ["gw"]}
        R1, R2 = C[1], C[2]
        er = sc.flow(Bg(GB_) + 1, ["ds_read_b128 %s, %s ; @lg gr" % (R1, aGR), "ds_read_b128 %s, %s offset:8192 ; @lg gr" % (R2, aGR)], cap=36)
        B = AB[0:6]; mean = SL[0]
        b = [["s_mov_b32 %s, 0" % s_m[0], "s_mov_b32 %s, -1" % s_m[1]],
             "v_cvt_pk_bf16_f32 %s, %s, 0" % (B[1], mean), "v_lshlrev_b32 %s, 16, %s" % (T[2], B[1]), "v_sub_f32 %s, %s, %s" % (T[2], mean, T[2]),
             "v_cvt_pk_bf16_f32 %s, %s, %s" % (B[0], mean, T[2]),
             "v_cndmask_b32 %s, 0, %s, %s" % (B[4], B[0], s_m), "v_cndmask_b32 %s, 0, %s, %s" % (B[5], B[1], s_m),
             "v_cndmask_b32 %s, %s, 0, %s" % (B[0], B[0], s_m), "v_cndmask_b32 %s, %s, 0, %s" % (B[1], B[1], s_m),
             "v_mul_f32 %s, %s, %s" % (vsc, vsc, SL[1])]
        if O: b += ["ds_write_b32 %s, %s" % (aRW, SL[1])]
        eb = sc.flow(e, b, cap=CAP)
        ad = [["@waitl gr", "v_add_f32 %s, %s, %s" % (R1[2], R1[2], R2[2])]]
        for k, src in enumerate((R1[2], R1[0], R2[0], R1[1], R2[1])):
            hi, lo = AB[6 + 2 * k], AB[7 + 2 * k]
            ad += ["v_cvt_pk_bf16_f32 %s, %s, %s" % (hi, src, src), "v_lshlrev_b32 %s, 16, %s" % (T[2], hi),
                   "v_sub_f32 %s, %s, %s" % (T[2], src, T[2]), "v_cvt_pk_bf16_f32 %s, %s, 0" % (lo, T[2])]
        e = sc.flow(max(er + 3, eb), ad, cap=CAP); assert e <= kpos - 1, e
        print(tg, "gather loads end", g_gl, "chk", g_chk, "corr operands ready at", e, "kpos", kpos)
        def blk(G_, mul, so, off, tag="es"):
            g_ = []
            for hf in range(2):
                g_ += ["v_mul_f32 %s, %s, %s" % (G_[i], G_[i], mul(i)) for i in range(8 * hf, 8 * hf + 8)]
                g_ += ["v_cvt_pk_bf16_f32 %s, %s, %s" % (G_[8 * hf + i], G_[8 * hf + 2 * i], G_[8 * hf + 2 * i + 1]) for i in range(4)]
                g_ += ["buffer_store_dwordx4 %s, %s, %s, %s offen offset:%d %s ; @vm %s" % (G_[8 * hf:8 * hf + 4], vl16, sW, so, off + hf * 1024, SC, tag)]
            return g_
        ep = blk(A1[0], lambda i: vsc, S["e0"], 0) + blk(A1[1], lambda i: vsc, S["e0"], 2048)
        ecap = opt.get("ecapO" if O else "ecap", 40 if O else 32)
        if O: sc.put(kpos + 10, ["ds_read_b128 %s, %s offset:%d ; @lg rs" % (RS[4 * k:4 * k + 4], aRR, 32 * k) for k in range(4)], 2)
        def flag(inc, tag):
            return X("""@wait %s
                s_mov_b64 exec, 1
                buffer_store_dword {vn}, off, {sW}, {s_afl} {SC}
                s_mov_b64 exec, -1""" % tag) + (X("s_add_u32 {s_afl}, {s_afl}, %d" % (inc << opt.get("fs", 0))) if inc else [])
        e = sc.flow(kpos + 3, ep, cap=opt.get("qcap", ecap), vs=1); g_qk = e
        if O:
            ep = []
            for nb in range(4):
                if nb == 2: ep.append("s_add_u32 %s, %s, 4096" % (S["e1"], S["e1"]))
                ep += blk(A1[2 + nb], lambda i: RS[i], S["e1"], (nb & 1) * 2048)
            ep[0] = ["@waitl rs", ep[0]]
            e = sc.flow(max(e - 1, kpos + opt.get("vdel", 15)), ep, cap=ecap, vs=1); g_ep = e
            g_fl = g_fa = sc.flow(g_ep + opt.get("flaO", 24), [flag(16384, "es")], cap=48, vs=1)
        else:
            g_fa = sc.flow(g_qk + opt.get("fla", 24), [flag(8192, "es")], cap=48, vs=1)
            e = sc.flow(max(e, kpos + opt.get("hdel", 20)), blk(A1[2], lambda i: A1[4][i], S["eh"], 0, "eh") + blk(A1[3], lambda i: A1[5][i], S["eh"], 2048, "eh"), cap=ecap, vs=1); g_ep = e
            g_fl = sc.flow(max(g_fa, g_ep + opt.get("flb", 24)), [flag(8192, "eh")], cap=48, vs=1)
        print(tg, "qk end", g_qk, "epilogue1 end", g_ep, "flags at", g_fa, g_fl)
        P2.during(sc, O, opt, locals())
        if opt.get("rep"): sc.report()
        def corr(k):
            e_, b_ = k >> 1, k & 1
            A_ = AB[6 + 2 * e_:10 + 2 * e_] if b_ == 0 else AB[4 + 2 * e_:8 + 2 * e_]
            B_ = AB[0:4] if b_ == 0 else AB[2:6]
            if O and 2 <= k < 6: A_, B_ = B_, A_
            D_ = A1[k] if k < 6 else A2[k - 6]
            return "%s %s, %s, %s, %s" % (MF, D_, A_, B_, D_ if k < 6 else "0")
        def csm(k):
            D_ = CA[0] if k < 4 else (CA[2] if k < 6 else CA[1])
            return ["@waitl c%d" % k, "%s %s, %s, %s, %s" % (MF, D_, ON, CFR[k if k < 6 else k - 6], "0" if k in (0, 4, 6) else D_)]
        bar = {Bg(n): n for n in range(15)}
        for i, (kind, f) in enumerate(seq):
            stamp(i)
            if kind == "k": a(corr(f))
            elif kind == "c": a.ext(csm(f))
            else:
                n, p, s, nb, ar = frag(f)
                if f % 2 == 0: a("@waitl f%d f%d xr%d", f, f + 1, p)
                A_, B_ = RING[f % 8], XF(p, s)
                if O and f < 192 and nb >= 2: A_, B_ = B_, A_
                D_ = A1[nb] if f < 192 else A2[nb]
                a("%s %s, %s, %s, %s", MF, D_, A_, B_, "0" if f < 6 else str(D_))
                if f + 7 < 320: a.ext(wrd(f + 7))
            for gr in sc.fill[i]: a.ext(gr)
            if i in bar:
                n = bar[i]
                if bw[n]: a("@wait " + " ".join(bw[n]))
                if n in bwl: a("@waitl " + " ".join(bwl[n]))
                a("s_barrier")
        stamp("E")
        for _, _, gr in sorted(sc.over): a.ext(gr)
        if not O: a("@save pg\ns_branch %s_p2", label)
    a("%s_p2:\n@merge pg", label)
    P2.phase2(a, ool, label, opt, locals())
    a("%s_end:\ns_endpgm", label)
    lines = []
    for l in a.L: lines += l.split("\n")
    a0.L += sch.fixhz(sch.resolve(lines), opt.get("hzv")) + sch.fixhz(ool.L)
    return dict(vgpr=512, accum=256, lds=163840)
```

```python
from g5 import *
def pre_code(L):
    g = L; X = g["X"]; S = g["S"]; POS = g["POS"]
    aS, aX, aC, aP, AB, CL, T = g["aS"], g["aX"], g["aC"], g["aP"], g["AB"], g["CL"], g["T"]
    ON, SN, SG, XR, sq = g["ON"], g["SN"], g["SG"], g["XR"], g["sq"]
    s_m = g["s_m"]; FS = g["opt"].get("fs", 0)
    addr = X("""
        v_lshrrev_b32 {t0}, 5, {lane}
        v_bfe_u32 {t1}, {lane}, 2, 2
        v_bfe_u32 {t2}, {lane}, 4, 1
        v_and_b32 {t3}, 3, {lane}
        v_lshlrev_b32 {t3}, 3, {t3}
        v_lshl_add_u32 {t3}, {t2}, 5, {t3}
        v_lshl_add_u32 {t3}, {t0}, 10, {t3}
        v_lshl_add_u32 {t3}, {t1}, 7, {t3}
        v_lshrrev_b32 {t1}, 1, {t1}
        v_lshl_add_u32 {a0}, {t1}, 6, {t3}
        v_xor_b32 {a1}, 64, {a0}
        v_bfe_u32 {t1}, {lane}, 1, 3
        v_xor_b32 {t1}, {t1}, {t0}
        v_and_b32 {t3}, 31, {lane}
        v_lshlrev_b32 {t3}, 7, {t3}
        v_lshl_add_u32 {t3}, {t1}, 4, {t3}
        s_add_u32 {s_t}, {s_w4k}, %d
        v_add_u32 {x0}, {s_t}, {t3}
        v_xor_b32 {x1}, 32, {x0}
        v_xor_b32 {x2}, 64, {x0}
        v_xor_b32 {x3}, 96, {x0}
        v_add_u32 {a2}, 0x10000, {a0}
        v_add_u32 {a3}, 0x10000, {a1}
        """ % XST(0), a0=aS[0], a1=aS[1], a2=aS[2], a3=aS[3], x0=aX[0], x1=aX[1], x2=aX[2], x3=aX[3])
    e = dict(a0=aS[0], c0=aC[0], c1=aC[1], c2=aC[2], p0=aP[0], p1=aP[1], A0=g["voA"][0], A1=g["voA"][1])
    for k in "v16m aGW aGR voSt aRW vsc voK voV vP voXr".split(): e[k] = g[k]
    p = []
    p += ["v_mov_b32 %s, %s" % (ON[i], ONE2) for i in range(4)] + ["v_mov_b32 %s, 0" % r for r in sq]
    p += X("""
        s_and_b32 {s_t}, {s_w}, 1
        s_lshl_b32 {s_t}, {s_t}, 6
        v_xor_b32 {c2}, {s_t}, {a0}
        s_lshr_b32 {s_t2}, {s_w}, 1
        s_lshl_b32 {s_t}, {s_t2}, 11
        s_add_u32 {s_t3}, {s_t}, %d
        v_add_u32 {c0}, {s_t3}, {c2}
        s_add_u32 {s_t3}, {s_t}, %d
        v_add_u32 {c1}, {s_t3}, {c2}
        s_lshl1_add_u32 {s_t3}, {s_t}, %d
        v_add_u32 {c2}, {s_t3}, {c2}
        v_and_b32 {v16m}, 0x1f0, {vl16}
        s_add_u32 {s_t3}, {s_w4k}, %d
        v_add_u32 {aGW}, {s_t3}, {v16m}
        v_lshl_add_u32 {aGR}, {t0}, 12, {v16m}
        v_add_u32 {aGR}, %d, {aGR}
        v_lshlrev_b32 {voSt}, 4, {t0}
        s_add_u32 {s_t3}, {s_t3}, 1024
        v_lshrrev_b32 {aRW}, 2, {v16m}
        v_add_u32 {aRW}, {s_t3}, {aRW}
        s_bitcmp1_b32 {s_c}, 1
        s_cselect_b32 {s_t}, 1.0, %s
        v_mov_b32 {vsc}, {s_t}
        s_and_b32 {s_t}, {s_x8}, 1
        s_lshl1_add_u32 {s_csb}, {s_c}, {s_t}
        s_lshl2_add_u32 {s_csb}, {s_csb}, {s_w}
        s_lshl_b32 {s_csb}, {s_csb}, 12
        s_add_u32 {s_csb}, {s_csb}, %d
        s_lshl_b32 {s_t}, {s_own}, 9
        s_add_u32 {s_acsp}, {s_csb}, {s_t}
        s_lshl_b32 {s_astg}, {s_tok}, 9
        s_add_u32 {s_astg}, {s_astg}, %d
        s_lshr_b32 {s_astp}, {s_astp}, 6
        s_add_u32 {s_astp}, {s_astp}, %d
        s_mul_i32 {s_eh}, {s_tok}, 144
        s_lshl3_add_u32 {s_asn}, {s_q}, {s_eh}
        s_and_b32 {s_t}, {s_ti}, 1
        s_lshl2_add_u32 {s_asn}, {s_t}, {s_asn}
        s_lshl_b32 {s_e0}, {s_t}, 12
        s_and_b32 {s_t}, {s_ti}, 2
        s_add_u32 {s_asn}, {s_asn}, {s_t}
        s_lshl_b32 {s_asn}, {s_asn}, 10
        s_add_u32 {s_asn}, {s_asn}, %d
        s_lshl_b32 {s_t}, {s_t}, 20
        s_add_u32 {s_e0}, {s_e0}, {s_t}
        s_lshl2_add_u32 {s_e1}, {s_tok}, {s_q}
        s_lshl_b32 {s_e1}, {s_e1}, 13
        s_add_u32 {s_e0}, {s_e0}, {s_e1}
        s_add_u32 {s_e0}, {s_e0}, %d
        s_add_u32 {s_e1}, {s_e1}, %d
        s_mul_i32 {s_t}, {s_q}, 28
        s_add_u32 {s_eh}, {s_eh}, {s_t}
        s_lshl2_add_u32 {s_eh}, {s_ti}, {s_eh}
        s_lshl_b32 {s_eh}, {s_eh}, 10
        s_add_u32 {s_eh}, {s_eh}, %d
        s_lshl4_add_u32 {s_afl}, {s_tok}, {s_c}
        s_lshl_b32 {s_afl}, {s_afl}, {fs2}
        s_add_u32 {s_afl}, {s_afl}, %d
        """ % (WST(POS) + 8192, PO, WST(POS), SCR, SCR, fx(QSCALE), WS_CS, WS_ST, WS_ST, WS_AF, WS_QK, WS_V, WS_AF + 32 * 1024, WS_FL + (512 << FS)), fs2=2 + FS, **e)
    p += ["v_mov_b32 %s, -1" % SN[i] for i in range(4)] + ["v_mov_b32 %s, 0" % AB[i] for i in (2, 3)]
    p += X("""
        s_and_b32 {s_t}, {s_j}, 3
        s_lshl2_add_u32 {s_rt2}, {s_x8}, {s_t}
        s_mul_i32 {s_wd}, {s_w}, %d
        s_lshl_b32 {s_t}, {s_ct2}, 2
        s_mov_b32 {m0}, 0x10210210
        s_mov_b32 {m1}, 0x2102
        s_lshr_b64 {s_m}, {s_m}, {s_t}
        s_and_b32 {s_pg}, {m0}, 0xfff
        s_and_b32 {s_t}, {s_t}, 12
        s_lshr_b32 {s_t}, 0x65436543, {s_t}
        s_and_b32 {s_t}, {s_t}, 0xffff
        s_lshl_b32 {s_t}, {s_t}, 12
        s_or_b32 {s_pg}, {s_pg}, {s_t}
        s_lshl_b32 {s_fl}, {s_rt2}, {fs7}
        s_add_u32 {s_fl}, {s_fl}, %d
        s_and_b32 {s_t}, {s_ct2}, 1
        s_lshl_b32 {n0}, 0x44444444, {s_t}
        s_or_b32 {n0}, {n0}, 0x88888888
        s_lshl_b32 {n1}, 0x55, {s_t}
        s_or_b32 {n1}, {n1}, 0x88
        s_lshl_b32 {s_t}, {s_rt2}, 3
        s_sub_i32 {s_t}, 32, {s_t}
        s_max_i32 {s_t}, {s_t}, 0
        s_lshl_b64 {s_m}, -1, {s_t}
        s_and_b32 {n0}, {n0}, {m0}
        s_lshl2_add_u32 {s_t2}, {s_ct2}, {s_w}
        s_lshl_b32 {s_t2}, {s_t2}, 10
        s_lshl_b32 {s_kvb}, {s_rt2}, 16
        s_add_u32 {s_kvb}, {s_kvb}, {s_t2}
        s_add_u32 {s_kvb}, {s_kvb}, %d
        s_mul_i32 {s_t}, {s_rt2}, %d
        s_add_u32 {s_t}, {s_t}, %d
        s_add_u32 {s_os}, {s_t}, {s_t2}
        s_lshl1_add_u32 {s_ao}, {s_w4k}, {s_t}
        s_mul_i32 {s_ah}, {s_w}, %d
        s_add_u32 {s_ah}, {s_ah}, {s_t}
        s_add_u32 {s_ah}, {s_ah}, 32768
        s_lshl_b32 {s_st}, {s_rt2}, 10
        s_add_u32 {s_st}, {s_st}, %d
        s_and_b32 {s_t}, {s_w}, 1
        s_lshl1_add_u32 {s_xo}, {s_rt2}, {s_t}
        s_lshl_b32 {s_xo}, {s_xo}, 8
        s_add_u32 {s_xo}, {s_xo}, {s_ct2}
        s_lshr_b32 {s_t2}, {s_w}, 1
        s_lshl1_add_u32 {s_xo}, {s_xo}, {s_t2}
        s_lshl_b32 {s_xo}, {s_xo}, 6
        s_lshl_b32 {s_t2}, {s_t2}, 6
        v_bfe_u32 {t1}, {lane}, 2, 2
        v_lshl_add_u32 {p0}, {t0}, 2, {t1}
        v_lshlrev_b32 {p0}, 7, {p0}
        v_lshrrev_b32 {t1}, 1, {t1}
        v_lshl_add_u32 {p0}, {t1}, 6, {p0}
        v_lshl_add_u32 {p0}, {t2}, 5, {p0}
        v_and_b32 {t1}, 1, {lane}
        v_lshl_add_u32 {p0}, {t1}, 4, {p0}
        v_bfe_u32 {t1}, {lane}, 1, 1
        v_lshl_add_u32 {p0}, {t1}, 3, {p0}
        v_xor_b32 {p0}, {s_t2}, {p0}
        s_add_u32 {s_t2}, {s_w4k}, %d
        v_add_u32 {p0}, {s_t2}, {p0}
        v_xor_b32 {p1}, 64, {p0}
        v_add_u32 {voK}, %d, {vl16}
        v_and_b32 {t1}, 15, {lane}
        v_lshlrev_b32 {voV}, 4, {t1}
        v_lshl_add_u32 {voV}, {t0}, 9, {voV}
        v_lshl_add_u32 {voV}, {t2}, 10, {voV}
        s_mul_i32 {s_t2}, {s_t}, 768
        s_sub_u32 {s_t2}, %d, {s_t2}
        v_add_u32 {voV}, {s_t2}, {voV}
        s_mul_i32 {s_t}, {s_t}, %d
        s_sub_u32 {s_t2}, %d, {s_t}
        v_add_u32 {A0}, {s_t}, {vl16}
        v_add_u32 {A1}, {s_t2}, {vl16}
        v_lshlrev_b32 {voXr}, 6, {v16m}
        v_lshl_add_u32 {voXr}, {t0}, 4, {voXr}
        v_lshrrev_b32 {t1}, 2, {lane}
        v_and_b32 {t3}, 3, {lane}
        v_lshlrev_b32 {t3}, 2, {t3}
        s_lshr_b32 {s_t}, {s_ct2}, 1
        s_lshl_b32 {s_t}, {s_t}, 4
        v_lshl_add_u32 {vP}, {t1}, 6, {t3}
        v_add_u32 {vP}, {s_t}, {vP}
        v_and_b32 {t1}, 1, {t1}
        v_lshl_add_u32 {t3}, {t1}, 6, {t3}
        v_lshl_add_u32 {t3}, {t2}, 13, {t3}
        s_lshl4_add_u32 {s_t}, {s_w}, 8704
        v_add_u32 {t3}, {s_t}, {t3}
        v_cmp_lt_u32 vcc, 39, {lane}
        v_cndmask_b32 {vP}, {vP}, {t3}, vcc
        v_lshlrev_b32 {vP}, {fs}, {vP}
        s_mov_b32 {s_lim}, %d
        v_and_b32 {t1}, 31, {lane}
        v_lshlrev_b32 {t2}, 2, {t0}
        v_sub_u32 {t1}, {t1}, {t2}
        v_mov_b32 {t2}, {NEG}
        """ % (448 * 1024, WS_FL, WS_QK + 32768, 288 * 1024, WS_AF, 28 * 1024, WS_ST, PA(7), 2 << 20, WS_V - WS_QK, 144 * 1024, 144 * 1024, 120 << 23), fs7=7 + FS, fs=FS, **e)
    for r in range(0, 16, 2):
        p += ["v_cmp_le_i32 vcc, %d, %s" % (8 * (r >> 2) + (r & 3), T[1]), "v_cmp_le_i32 %s, %d, %s" % (s_m, 8 * (r >> 2) + (r & 3) + 1, T[1]),
              "v_cndmask_b32 %s, %s, 0, vcc" % (CL[r], T[2]), "v_cndmask_b32 %s, %s, 0, %s" % (CL[r + 1], T[2], s_m)]
    p += X("v_lshl_add_u32 {t3}, {t0}, 4, {s_t3}")
    st = []
    for i in range(4):
        st += ["v_dot2c_f32_bf16 %s, %s, %s" % (sq[0], ON[0], XR[0][i]), "v_dot2c_f32_bf16 %s, %s, %s" % (sq[1], XR[0][i], XR[0][i]),
               "v_dot2c_f32_bf16 %s, %s, %s" % (sq[2], ON[0], XR[1][i]), "v_dot2c_f32_bf16 %s, %s, %s" % (sq[3], XR[1][i], XR[1][i])]
    st = ["@wait st"] + st
    st += ["v_permlane32_swap_b32 %s, %s" % (sq[0], sq[2]), "v_permlane32_swap_b32 %s, %s" % (sq[1], sq[3]),
           "v_add_f32 %s, %s, %s" % (sq[0], sq[0], sq[2]), "v_add_f32 %s, %s, %s" % (sq[1], sq[1], sq[3]),
           "v_permlane16_swap_b32 %s, %s" % (sq[0], sq[1]), "v_add_f32 %s, %s, %s" % (sq[0], sq[0], sq[1])]
    for sh in (8, 4, 2, 1): st.append("v_add_f32_dpp %s, %s, %s row_ror:%d row_mask:0xf bank_mask:0xf" % (sq[0], sq[0], sq[0], sh))
    st += ["v_mov_b32 %s, %s" % (sq[1], sq[0]), "v_permlane16_swap_b32 %s, %s" % (sq[0], sq[1]), "v_mul_f32 %s, %s, %s" % (SG[0], fx(-1.0 / 512), sq[0]),
           "v_mul_f32 %s, %s, %s" % (sq[1], fx(1.0 / 512), sq[1]), "v_fma_f32 %s, -%s, %s, %s" % (sq[1], SG[0], SG[0], sq[1]),
           "v_max_f32 %s, 0, %s" % (sq[1], sq[1]), "v_add_f32 %s, %s, %s" % (SG[2], fx(1e-5), sq[1]), "v_rsq_f32 %s, %s" % (SG[1], SG[2])]
    return addr, p, st
```

```python
import re, sys
TRANS = ("v_exp_", "v_log_", "v_rcp_", "v_rsq_", "v_sqrt_", "v_sin_", "v_cos_")
def regs(op):
    op = op.strip()
    m = re.fullmatch(r"([vas])\[(\d+):(\d+)\]", op)
    if m: return {(m.group(1), i) for i in range(int(m.group(2)), int(m.group(3)) + 1)}
    m = re.fullmatch(r"-?\|?([vas])(\d+)\|?", op)
    if m: return {(m.group(1), int(m.group(2)))}
    if op == "vcc": return {("s", 106), ("s", 107)}
    if op == "vcc_lo": return {("s", 106)}
    if op == "vcc_hi": return {("s", 107)}
    if op == "m0": return {("m", 0)}
    if op in ("exec", "exec_lo", "exec_hi"): return {("e", 0)}
    return set()
class I: pass
def parse(line, ln):
    s = line.split(";")[0].strip()
    if not s or s.endswith(":") or s.startswith("."): return None
    mn, _, rest = s.partition(" ")
    parts = [p.strip() for p in rest.split(",")]
    ops = []
    mods = ""
    for k, p in enumerate(parts):
        t = p.split()
        if not t: continue
        ops.append(t[0]); mods += " " + " ".join(t[1:])
    i = I(); i.mn = mn; i.ln = ln; i.text = s; i.mods = mods
    R = [regs(o) for o in ops]
    U = lambda l: set().union(*l) if l else set()
    i.kind = "other"; i.w = set(); i.r = set(); i.ws = 1
    if mn == "s_nop": i.ws = int(ops[0]) + 1
    if mn.startswith("v_mfma"):
        i.kind = "mfma"; i.D, i.A, i.B, i.C = R[0], R[1], R[2], R[3]; i.w = R[0]; i.r = R[1] | R[2] | R[3]
        i.passes = 8 if "32x32" in mn else 4
    elif mn.startswith("v_"):
        i.kind = "valu"; i.w = set(R[0]); i.r = U(R[1:])
        if "swap" in mn: i.w |= R[1]; i.r |= R[0]
        if mn.startswith(("v_dot2c", "v_fmac", "v_pk_fmac")): i.r |= R[0]
        if mn.startswith("v_cndmask") and len(ops) == 3: i.r |= regs("vcc")
        if "_co_" in mn: i.w |= R[1]; i.r = U(R[2:])
        i.trans = mn.startswith(TRANS); i.dot = mn.startswith("v_dot")
        i.dpp = any(k in mods for k in ("row_", "quad_perm", "wave_")); i.perm = mn.startswith("v_permlane")
        if i.dpp: i.r |= R[0]
        i.rl = mn.startswith(("v_readfirstlane", "v_readlane"))
    elif mn.startswith("ds_"):
        i.kind = "ds"
        if mn.startswith("ds_read"): i.w = R[0]; i.r = U(R[1:])
        else: i.r = U(R)
    elif mn.startswith(("buffer_", "global_")):
        i.kind = "vmem"; i.lds = " lds" in mods
        if mn.startswith("buffer_load") and not i.lds: i.w = R[0]; i.r = U(R[1:])
        else: i.r = U(R)
        i.wide = set(R[0]) if ("store_dwordx4" in mn or "store_dwordx3" in mn or "cmpswap_x2" in mn) else set()
    elif mn.startswith("s_"):
        i.kind = "salu"
        if not mn.startswith(("s_cmp", "s_cbranch", "s_branch", "s_waitcnt", "s_nop", "s_barrier", "s_sleep", "s_endpgm", "s_setprio", "s_bitcmp")) and R:
            i.w = R[0]; i.r = U(R[1:])
        else: i.r = U(R)
    return i
def need(p, c):
    n = 0
    vw = {x for x in p.w if x[0] in "va"}; sw = {x for x in p.w if x[0] == "s"}
    if p.kind == "valu":
        if c.kind == "mfma" and vw & c.r: n = max(n, 3 if p.dot else 2)
        if c.kind == "valu":
            if p.trans and not c.trans and vw & c.r: n = max(n, 1)
            if (c.perm or c.dpp) and vw & c.r: n = max(n, 2)
            if c.rl and vw & c.r: n = max(n, 1)
            if sw & c.r: n = max(n, 2)
            if p.dot:
                if c.mn != p.mn and vw & (c.r | c.w): n = max(n, 3)
                if c.mn == p.mn and vw & (c.r - c.w): n = max(n, 3)
        if p.dot and c.kind in ("ds", "vmem") and vw & (c.r | c.w): n = max(n, 3)
        if c.kind == "vmem" and sw & c.r: n = max(n, 5)
    if p.kind == "mfma":
        L = p.passes + 4
        if c.kind in ("valu", "ds", "vmem") and p.D & (c.r | c.w): n = max(n, L)
        if c.kind == "mfma":
            if p.D & (c.A | c.B): n = max(n, L)
            if p.D & c.C and (p.D != c.C or p.passes != c.passes): n = max(n, L - 2)
            if p.D & c.D and not (p.D & c.C): n = max(n, L - 2)
        if c.kind == "valu" and p.C & c.w: n = max(n, p.passes - 1)
    if p.kind == "salu" and ("m", 0) in p.w and c.kind == "vmem" and c.lds: n = max(n, 1)
    if p.kind == "vmem" and p.wide:
        if c.kind == "valu" and p.wide & c.w: n = max(n, 2)
        elif p.wide & c.w: n = max(n, 1)
    return n
def check(path):
    ins = []
    for ln, line in enumerate(open(path), 1):
        if line.startswith(".section"): break
        i = parse(line, ln)
        if i: ins.append(i)
    bad = 0
    for k, c in enumerate(ins):
        d = 0
        for j in range(k - 1, max(-1, k - 14), -1):
            p = ins[j]
            if p.mn in ("s_branch", "s_endpgm"): break
            n = need(p, c)
            if n > d:
                print("HAZARD need %d have %d: L%d %s  ->  L%d %s" % (n, d, p.ln, p.text, c.ln, c.text)); bad += 1
            d += p.ws
            if d >= 13: break
    print(path, "instrs", len(ins), "hazards", bad)
    return bad
if __name__ == "__main__":
    for p in sys.argv[1:]: check(p)
```

```python
import re, copy
import hz

def resolve(lines):
    out = []; st = [[[], []]]; saved = {}; m0 = None
    for l in lines:
        s = l.strip()
        if s.startswith("@wait ") or s.startswith("@waitl "):
            k = 1 if s.startswith("@waitl") else 0
            tags = s.split()[1:]; ns = []
            for x in st:
                idx = -1
                for i, t in enumerate(x[k]):
                    if t in tags: idx = i
                if idx >= 0: ns.append(len(x[k]) - 1 - idx)
            if not ns: continue
            n = min(min(ns), 15 if k else 63)
            w = ("lgkmcnt(%d)" if k else "vmcnt(%d)") % n
            if out and out[-1].strip().startswith("s_waitcnt") and w[:4] not in out[-1]: out[-1] += " " + w
            else: out.append("    s_waitcnt " + w)
            for x in st: x[k] = x[k][len(x[k]) - n:] if n and n < len(x[k]) else ([] if n == 0 else x[k])
        elif s.startswith("@save "): saved[s.split()[1]] = copy.deepcopy(st)
        elif s.startswith("@restore "): st = copy.deepcopy(saved[s.split()[1]]); m0 = None
        elif s.startswith("@merge "): st += copy.deepcopy(saved[s.split()[1]]); m0 = None
        else:
            m = re.search(r";\s*@m0 (\S+)", l)
            if m: m0 = m.group(1); l = l[:m.start()].rstrip()
            m = re.search(r"\s*@use (\S+)", l)
            if m:
                assert m0 == m.group(1), "m0 clash: have %s at %s" % (m0, l)
                l = l[:m.start()] + l[m.end():]
            if "@novm" in l: out.append(l.split(";")[0].rstrip()); continue
            m = re.search(r";\s*@(vm|lg) (\S+)", l)
            tag = "?"
            if m: tag = m.group(2); l = l[:m.start()].rstrip()
            if s.startswith(("buffer_", "global_")):
                for x in st: x[0].append(tag)
            elif s.startswith("ds_"):
                for x in st: x[1].append(tag)
            if s.startswith("s_waitcnt"):
                for x in st:
                    if "vmcnt(0)" in s: x[0] = []
                    if "lgkmcnt(0)" in s: x[1] = []
            out.append(l)
    return out

def fixhz(lines, verbose=False):
    out = []; ins = []; nn = 0
    for ln, line in enumerate(lines):
        c = hz.parse(line, ln)
        if c is None: out.append(line); continue
        d = 0; short = 0; why = None
        for p in reversed(ins[-14:]):
            if p.mn in ("s_branch", "s_endpgm"): break
            n = hz.need(p, c)
            if n - d > short: short = n - d; why = p
            d += p.ws
            if d >= 13: break
        while short > 0:
            k = min(short, 8)
            nl = "    s_nop %d" % (k - 1); out.append(nl); ins.append(hz.parse(nl, ln)); short -= k; nn += k
            if verbose: print("  nop %d: %s -> %s" % (k, why.text, c.text))
        out.append(line); ins.append(c)
    if verbose: print("hazard nops:", nn)
    return out

def cost(gr): return sum(1 for x in gr if not x.startswith("@") and not x.endswith(":")) + 0.5 * sum(1 for x in gr if x.startswith("@wait"))
def isvm(gr): return any(x.startswith("buffer_") for x in gr)
def G(x): return list(x) if isinstance(x, (list, tuple)) else [x]

class Sch:
    def __init__(self, n, base):
        self.n = n; self.fill = [[] for _ in range(n)]; self.c = list(base); self.vm = [0] * n; self.m0 = [False] * n
        self.over = []
    def add(self, g, gr):
        gr = G(gr)
        if g >= self.n: self.over.append((g, len(self.over), gr)); return
        self.fill[g].append(gr); self.c[g] += cost(gr); self.vm[g] += isvm(gr)
    def put(self, g0, groups, per=2):
        for k, gr in enumerate(groups): self.add(g0 + k // per, gr)
        return g0 + (len(groups) + per - 1) // per
    def flow(self, g, groups, cap=5, vgap=1):
        lastv = -99
        for gr in groups:
            gr = G(gr); cs = cost(gr); v = isvm(gr)
            while g < self.n and ((self.c[g] + cs > cap and self.c[g] > 2.5) or (v and (self.vm[g] or g < lastv + vgap))): g += 1
            self.add(g, gr)
            if v: lastv = g
            if g >= self.n: g += 1
        return g + 1
    def dset(self, g, subs, stride=2):
        span = (len(subs) - 1) * stride
        while any(self.m0[k] for k in range(g, min(self.n, g + span + 1))) or any(k < self.n and self.vm[k] for k in range(g, g + span + 1, stride)): g += 1
        if g + span >= self.n:
            g = max(g, self.n); o = []
            for s in subs: o += G(s)
            self.add(g, o); return g, g
        for k in range(g, g + span + 1): self.m0[k] = True
        for i, s in enumerate(subs): self.add(g + i * stride, s)
        return g, g + span
    def report(self, step=8):
        print("cost/gap:", " ".join("%.1f" % (sum(self.c[i:i + step]) / len(self.c[i:i + step])) for i in range(0, self.n, step)))
        print("vm/8gap :", " ".join("%3d" % sum(self.vm[i:i + step]) for i in range(0, self.n, step)))
        print("excess>6:", sum(max(0, c - 6) for c in self.c), " total", sum(self.c), " over", len(self.over))
```

```python
from sch import resolve, fixhz, G
TR = ("v_exp_", "v_rcp_", "v_rsq_", "v_log_")
CV = dict(ld=12, st=26, dot=14, b128=6)
def c1(x):
    x = x.strip()
    if x.endswith(":"): return 0
    if x.startswith("@wait"): return 3
    if x.startswith("@"): return 0
    if x.startswith("buffer_store_dwordx4"): return CV["st"]
    if x.startswith("buffer_"): return CV["ld"]
    if x.startswith("v_dot2"): return CV["dot"]
    if x.startswith(TR): return 8
    if x.startswith("v_mfma"): return 8
    if x.startswith(("ds_read_b128", "ds_write_b128")): return CV["b128"]
    return 4
def cost(gr): return sum(c1(x) for x in gr)
def isvm(gr): return any(x.startswith("buffer_") for x in gr)
class Sch:
    def __init__(self, n, base, vs=2):
        self.n = n; self.fill = [[] for _ in range(n)]; self.b = list(base); self.c = list(base); self.vm = [0] * n; self.m0 = [False] * n
        self.over = []; self.vs = vs
    def add(self, g, gr):
        gr = G(gr)
        if g >= self.n: self.over.append((g, len(self.over), gr)); return
        self.fill[g].append(gr); self.c[g] += cost(gr); self.vm[g] += isvm(gr)
    def put(self, g0, groups, per=2):
        for k, gr in enumerate(groups): self.add(g0 + k // per, gr)
        return g0 + (len(groups) + per - 1) // per
    def vfree(self, g, vs=None):
        vs = vs or self.vs
        return not any(self.vm[k] for k in range(max(0, g - vs + 1), min(self.n, g + vs)))
    def fits(self, g, cs, cap): return self.c[g] + cs <= cap or self.c[g] == self.b[g]
    def flow(self, g, groups, cap=32, vs=None, vgap=0):
        lastv = -99
        for gr in groups:
            gr = G(gr); cs = cost(gr); v = isvm(gr)
            while g < self.n and (not self.fits(g, cs, cap) or (v and (not self.vfree(g, vs) or g < lastv + vgap))): g += 1
            self.add(g, gr)
            if v: lastv = g
            if g >= self.n: g += 1
        return g + 1
    def dset(self, g, hdr, subs, vs=None, cap=36):
        vs = vs or self.vs
        while True:
            while g < self.n and self.m0[g]: g += 1
            pl = []; k = g; c = list(self.c); vm = list(self.vm); ok = True
            for gr in [G(h) for h in hdr] + [G(s) for s in subs]:
                cs = cost(gr); v = isvm(gr)
                while k < self.n and not ((c[k] + cs <= cap or c[k] == self.b[k]) and (not v or not any(vm[j] for j in range(max(0, k - vs + 1), min(self.n, k + vs))))): k += 1
                if k >= self.n: break
                pl.append(k); c[k] += cs; vm[k] += v
            if k >= self.n:
                g = max(g, self.n); o = []
                for s in list(hdr) + list(subs): o += G(s)
                self.add(g, o); return g, g
            bad = [j for j in range(pl[0], pl[-1] + 1) if self.m0[j]]
            if not bad: break
            g = bad[-1] + 1
        for k, gr in zip(pl, list(hdr) + list(subs)): self.add(k, gr)
        for j in range(pl[0], pl[-1]): self.m0[j] = True
        return pl[0], pl[-1]
    def report(self, step=10):
        print("cyc/gap :", " ".join("%3d" % (sum(max(32, c) for c in self.c[i:i + step]) / len(self.c[i:i + step])) for i in range(0, self.n, step)))
        print("use/gap :", " ".join("%3d" % (sum(self.c[i:i + step]) / len(self.c[i:i + step])) for i in range(0, self.n, step)))
        print("vm/step :", " ".join("%3d" % sum(self.vm[i:i + step]) for i in range(0, self.n, step)))
        print("est cycles", sum(max(32, c) for c in self.c), " excess", sum(max(0, c - 32) for c in self.c), " vm", sum(self.vm), " over", len(self.over), sum(cost(g) for _, _, g in self.over))
```

```python
import sys, json
from asmlib import *
import k1
HEADER = open("cdna_kernels/%s.s.ref" % NAME).read().split("; Override launch")[0]

def build(kernels, opt):
    a = Asm()
    infos = []
    for label, fn, grid in kernels:
        a.L.append(".globl %s\n.p2align 8\n.type %s,@function" % (label, label))
        infos.append(fn(a, label, opt))
    h = HEADER
    if len(kernels) == 1 and kernels[0][0] == NAME + "_kernel":
        h += "; @launch grid=(%d,1,1) block=(%d,1,1) lds=%d\n" % (kernels[0][2], infos[0].get("block", 256), infos[0]["lds"])
    else:
        for (label, fn, grid), inf in zip(kernels, infos):
            h += "; @launch kernel=%s grid=(%d,1,1) block=(%d,1,1) lds=%d\n" % (label, grid, inf.get("block", 256), inf["lds"])
    h += '.amdgcn_target "amdgcn-amd-amdhsa--gfx950"\n.text\n'
    t = '.section .rodata,"a"\n'
    for (label, fn, grid), inf in zip(kernels, infos):
        t += ".p2align 6\n" + kd(label, inf["vgpr"], inf["accum"]) + "\n"
    return h + a.text() + t

if __name__ == "__main__":
    out = sys.argv[1]
    which = sys.argv[2]
    opt = json.loads(sys.argv[3]) if len(sys.argv) > 3 else {}
    ks = []
    for w in which.split(","):
        if w == "k1": ks.append(("k1_kernel", k1.gen_k1, 256))
        elif w == "k1s":
            import k1s; ks.append(("k1_kernel", k1s.gen_k1, 256))
        elif w == "fz":
            import fz; ks.append(("fz_kernel", fz.gen, 256))
        elif w == "g1":
            import g1; ks.append(("g1_kernel", g1.gen, 256))
        elif w == "g3":
            import g3; ks.append(("g3_kernel", g3.gen, 256))
        elif w == "g5":
            import g5; ks.append(("g5_kernel", g5.gen, 256))
        elif w == "att":
            import att; ks.append(("att_kernel", att.gen_att, 256))
        elif w == "k3":
            import k3; ks.append(("k3_kernel", k3.gen_k3, 256))
    if len(ks) == 1: ks = [(NAME + "_kernel", ks[0][1], ks[0][2])]
    open(out, "w").write(build(ks, opt))
```
